```python
import torch

def _softmax(x, axis=-1):
    return torch.softmax(x, dim=axis)

def _gelu(x):
    return torch.nn.functional.gelu(x, approximate='tanh')

def _silu(x):
    return torch.nn.functional.silu(x)

def _sigmoid(x):
    return torch.sigmoid(x)

def _layernorm(x, axis=-1, eps=1e-05):
    m = x.mean(dim=axis, keepdim=True)
    v = x.var(dim=axis, keepdim=True, unbiased=False)
    return (x - m) / torch.sqrt(v + eps)

def _scatter_add(tgt, idx, src, axis=0):
    return tgt.clone().index_add_(axis, idx, src)

def _segment_sum(src, seg, n):
    out = torch.zeros((n,) + src.shape[1:], dtype=src.dtype)
    return out.index_add_(0, seg, src)

def _pad(x, pw):
    flat = tuple((v for pair in reversed(pw) for v in pair))
    return torch.nn.functional.pad(x, flat)
kernel_name = 'concat_heads__memory_aug_recurrent_mem_tr__ssm_conv_s4__prompt'

def setup_inputs():

    _w = lambda a: (lambda t: t.to(torch.bfloat16) if t.is_floating_point() else t)(torch.as_tensor(a))

    def _A_setup():
        B, S, Dm = (1, 2048, 576)
        H, Dh = (32, 128)
        M, seg = (8, 32)
        seg = min(seg, S)
        S = S // seg * seg
        return {'x': _w((lambda *s: torch.randn(*s, dtype=torch.bfloat16) * 0.05)(B, S, Dm)), 'mem0': _w((lambda *s: torch.randn(*s, dtype=torch.bfloat16) * 0.4)(B, M, Dm)), 'Wq': _w((lambda *s: torch.randn(*s, dtype=torch.bfloat16) * 6.4)(Dm, H, Dh) * Dm ** (-0.5)), 'Wk': _w((lambda *s: torch.randn(*s, dtype=torch.bfloat16) * 6.4)(Dm, H, Dh) * Dm ** (-0.5)), 'Wv': _w((lambda *s: torch.randn(*s, dtype=torch.bfloat16) * 0.4)(Dm, H, Dh) * Dm ** (-0.5)), 'Wo': _w((lambda *s: torch.randn(*s, dtype=torch.bfloat16) * 0.4)(H, Dh, Dm) * (H * Dh) ** (-0.5)), 'seg_len': seg}
    _A_in = _A_setup()

    def _B_setup():
        B, L, D, N = (1, 2048, 576, 128)
        A_re = -(lambda _x: torch.exp(torch.as_tensor(_x)))((lambda *s: torch.randn(*s, dtype=torch.bfloat16) * 3.2)(D, N))
        A_im = torch.pi * (lambda *s: torch.randn(*s, dtype=torch.bfloat16) * 0.05)(D, N)
        B_re = (lambda *s: torch.randn(*s, dtype=torch.bfloat16) * 0.2)(D, N)
        B_im = (lambda *s: torch.randn(*s, dtype=torch.bfloat16) * 0.1)(D, N)
        C_re = (lambda *s: torch.randn(*s, dtype=torch.bfloat16) * 0.2)(D, N)
        C_im = (lambda *s: torch.randn(*s, dtype=torch.bfloat16) * 0.2)(D, N)
        log_dt = (lambda *s: torch.randn(*s, dtype=torch.bfloat16) * 0.05)(D) * 0.5 - 4.0
        Dskip = (lambda *s: torch.randn(*s, dtype=torch.bfloat16) * 0.05)(D)
        return {'u': _w((lambda *s: torch.randn(*s, dtype=torch.bfloat16) * 0.05)(B, L, D)), 'A_re': _w(A_re), 'A_im': _w(A_im), 'B_re': _w(B_re), 'B_im': _w(B_im), 'C_re': _w(C_re), 'C_im': _w(C_im), 'log_dt': _w(log_dt), 'Dskip': _w(Dskip)}
    _B_in = _B_setup()
    return {'A_x': _A_in['x'], 'A_mem0': _A_in['mem0'], 'A_Wq': _A_in['Wq'], 'A_Wk': _A_in['Wk'], 'A_Wv': _A_in['Wv'], 'A_Wo': _A_in['Wo'], 'A_seg_len': _A_in['seg_len'], 'B_u': _B_in['u'], 'B_A_re': _B_in['A_re'], 'B_A_im': _B_in['A_im'], 'B_B_re': _B_in['B_re'], 'B_B_im': _B_in['B_im'], 'B_C_re': _B_in['C_re'], 'B_C_im': _B_in['C_im'], 'B_log_dt': _B_in['log_dt'], 'B_Dskip': _B_in['Dskip']}

def reference(A_x, A_mem0, A_Wq, A_Wk, A_Wv, A_Wo, A_seg_len, B_u, B_A_re, B_A_im, B_B_re, B_B_im, B_C_re, B_C_im, B_log_dt, B_Dskip):

    def _A_ref(x, mem0, Wq, Wk, Wv, Wo, seg_len):
        B, S, Dm = x.shape
        H, Dh = (Wq.shape[1], Wq.shape[2])
        M = mem0.shape[1]
        scale = Dh ** (-0.5)
        n_seg = S // seg_len
        L = M + seg_len
        idx = torch.arange(L)
        mask = (idx[:, None] < M) | (idx[:, None] >= idx[None, :])
        mem = mem0
        outs = []
        for s in range(n_seg):
            xs = x[:, s * seg_len:(s + 1) * seg_len, :].clone()
            h = torch.concatenate([mem, xs], axis=1)
            q = torch.einsum('btd,dhe->bhte', h, Wq)
            k = torch.einsum('btd,dhe->bhte', h, Wk)
            v = torch.einsum('btd,dhe->bhte', h, Wv)
            scores = torch.einsum('bhqe,bhke->bhqk', q, k) * scale
            scores = torch.where(mask[None, None], scores, -1000000000.0)
            p = _softmax(scores, axis=-1)
            o = torch.einsum('bhqk,bhke->bhqe', p, v)
            o = torch.einsum('bhte,hed->btd', o, Wo)
            mem = o[:, :M, :].clone()
            outs.append(o[:, M:, :])
        return torch.concatenate(outs, axis=1)

    def _B_ref(u, A_re, A_im, B_re, B_im, C_re, C_im, log_dt, Dskip):
        Bsz, L, D = u.shape
        dt = torch.exp(log_dt)[:, None]
        A = A_re + 1j * A_im
        Bc = B_re + 1j * B_im
        Cc = C_re + 1j * C_im
        logdA = dt * A
        dB = dt * Bc
        l = (lambda x, dt: x.to(dt))(torch.arange(L), A_re.dtype)
        P = torch.exp(logdA[:, :, None] * l[None, None, :])
        K = torch.einsum('dn,dnl,dn->dl', Cc, P, dB).real
        L2 = 2 * L
        Kp = _pad(K, ((0, 0), (0, L)))
        up = (lambda x, *d: x.permute(*d))(u, 0, 2, 1)
        up = _pad(up, ((0, 0), (0, 0), (0, L)))
        Kf = (lambda x, axes=(-2, -1): torch.fft.rfft2(x.float(), dim=axes))(Kp[:, None, :], axes=(-2, -1))
        Uf = (lambda x, axes=(-2, -1): torch.fft.rfft2(x.float(), dim=axes))(up[:, :, None, :], axes=(-2, -1))
        Yf = Uf * Kf[None, :, :, :]
        y = (lambda x, s, axes=(-2, -1): torch.fft.irfft2(x, s=s, dim=axes).to(torch.bfloat16))(Yf, (1, L2), axes=(-2, -1))[:, :, 0, :L]
        y = (lambda x, *d: x.permute(*d))(y, 0, 2, 1) + u * Dskip[None, None, :]
        return y
    a = _A_ref(A_x, A_mem0, A_Wq, A_Wk, A_Wv, A_Wo, A_seg_len)
    b = _B_ref(B_u, B_A_re, B_A_im, B_B_re, B_B_im, B_C_re, B_C_im, B_log_dt, B_Dskip)
    return torch.concatenate([a, b], axis=-1)
```

```python
import re
TRANS=('v_exp_f32','v_log_f32','v_rcp_f32','v_rsq_f32','v_sqrt_f32','v_sin_f32','v_cos_f32')
def regs(op):
    op=op.strip()
    m=re.fullmatch(r'([vas])\[(\d+):(\d+)\]',op)
    if m: return {m.group(1)+str(i) for i in range(int(m.group(2)),int(m.group(3))+1)}
    if re.fullmatch(r'[vas]\d+',op): return {op}
    if op in('vcc','exec'): return {op}
    if op in('vcc_lo','vcc_hi'): return {'vcc'}
    if op=='m0': return {'m0'}
    return set()
def passes(o):
    if '32x32' in o: return 8
    return 4
class E:
    def __init__(s):
        s.L=[]; s.vm=[]; s.lg=[]; s.h=[]; s.t=0; s.snap={}; s.uid=0
    def raw(s,x): s.L.append(x)
    def c(s,x): s.L.append('  ; '+x)
    def nop(s,n):
        while n>0:
            k=min(n,16); s.L.append('  s_nop %d'%(k-1)); s.t+=k; n-=k
    def wait(s,vm=None,lg=None):
        p=[]
        if vm is not None and vm<len(s.vm) or vm==0 and vm is not None:
            p.append('vmcnt(%d)'%min(vm,63)); s.vm=s.vm[len(s.vm)-vm:] if vm>0 else []
        if lg is not None and lg<len(s.lg) or lg==0 and lg is not None:
            p.append('lgkmcnt(%d)'%min(lg,15)); s.lg=s.lg[len(s.lg)-lg:] if lg>0 else []
        if p: s.L.append('  s_waitcnt '+' '.join(p)); s.t+=1
    def waitall(s): s.wait(0,0)
    def parse(s,x):
        x0=x.split(';')[0].strip()
        o,_,rest=x0.partition(' ')
        ops=[a.strip() for a in rest.split(',')] if rest else []
        mods=''
        if ops:
            parts=ops[-1].split()
            if len(parts)>1: ops[-1]=parts[0]; mods=' '.join(parts[1:])
        elif ' ' in rest: mods=rest
        R=[regs(a) for a in ops]
        U=lambda l:set().union(*l) if l else set()
        k='s'; d=set(); r=set(); C=set()
        if o.startswith('v_mfma'): k='m'; d=R[0]; r=R[1]|R[2]; C=R[3]
        elif o.startswith('v_smfmac'): k='m'; d=R[0]; r=R[1]|R[2]|R[3]; C=R[0]
        elif o.startswith('v_cmp'): k='v'; d=R[0]; r=U(R[1:])
        elif o.startswith('v_permlane') and 'swap' in o: k='v'; d=U(R); r=U(R)
        elif o.startswith('v_'):
            k='v'; d=R[0]; r=U(R[1:])
            if o.startswith(('v_fmac','v_mac','v_pk_fmac','v_bfi_b32_acc','v_dot2c')) or 'dst_unused:UNUSED_PRESERVE' in mods or (o.startswith('v_cvt_pk') and False): r|=d
            if o.startswith('v_cndmask') and len(ops)==3: r|={'vcc'}
            if '_co_' in o: d=R[0]|R[1]; r=U(R[2:])
        elif o.startswith('ds_read') : k='l'; d=R[0]; r=U(R[1:])
        elif o.startswith('ds_'): k='l'; r=U(R)
        elif o.startswith('buffer_load'):
            k='g'
            if re.search(r'\blds\b',mods): r=U(R)|{'m0'}
            else: d=R[0]; r=U(R[1:])
        elif o.startswith('buffer_store'): k='g'; r=U(R)
        elif o.startswith('buffer_atomic'):
            k='g'; r=U(R)
            if 'sc0' in mods: d=R[0]
        elif o.startswith('s_load'): k='sm'; d=R[0]; r=U(R[1:])
        elif o.startswith(('s_cmp','s_cbranch','s_branch','s_barrier','s_endpgm','s_setprio','s_sleep','s_bitcmp')): r=U(R)
        else:
            d=R[0] if R else set(); r=U(R[1:])
            if 'saveexec' in o: d=d|{'exec'}
        return o,k,d,r,C,mods,ops
    def __call__(s,x):
        for ln in x.strip().split('\n'):
            ln=ln.strip()
            if ln and not ln.startswith(';'): s.ins(ln)
    def ins(s,x):
        o,k,d,r,C,mods,ops=s.parse(x)
        touch=d|r|C
        nv=nl=None
        for i,q in enumerate(s.vm):
            if q&touch: nv=len(s.vm)-1-i
        for i,q in enumerate(s.lg):
            if q&touch: nl=len(s.lg)-1-i
        if nv is not None or nl is not None: s.wait(nv,nl)
        need=0
        isv=k=='v'; ism=k=='m'; mem=k in'gl'
        for (t,pk,po,pd,pr,pC,pmods) in s.h:
            dist=s.t-t-1; w=0
            if pk=='m':
                p=passes(po); N={4:8,8:12}[p]
                if ism:
                    if pd&r: w=N
                    elif pd&(C|d):
                        if not(C==pd and d==pd and passes(o)==p): w={4:6,8:10}[p]
                elif (isv or mem) and pd&touch: w=N
                if isv and pC&d: w=max(w,{4:3,8:7}[p])
            elif pk=='v':
                vg={x for x in pd if x[0] in'va' and x!='vcc'}
                sg=pd-vg
                if ism and vg&(r|C): w=2
                if isv and sg&r: w=max(w,2)
                if mem and sg&r: w=max(w,5)
                if isv and vg&r:
                    if o.startswith(('v_readfirstlane','v_readlane')): w=max(w,1)
                    if o.startswith('v_permlane') or 'row_' in mods or 'quad_perm' in mods or 'dpp' in o: w=max(w,2)
                    if po.replace('_e32','').replace('_e64','') in TRANS or 'op_sel' in pmods or 'dst_sel' in pmods: w=max(w,1)
                if mem and vg&r and po in TRANS: w=max(w,1)
                if o.startswith(('v_readlane','v_writelane')) and sg&r: w=max(w,4)
            elif pk=='g':
                if po.startswith('buffer_store') and ('x4' in po or 'x3' in po) and (isv or ism) and pr&d: w=2
            elif pk=='s':
                if 'm0' in pd and k=='g' and 'm0' in r: w=1
            need=max(need,w-dist)
        if need>0: s.nop(need)
        s.L.append('  '+x)
        s.h.append((s.t,k,o,d,r,C,mods)); s.t+=1
        s.h=[e for e in s.h if s.t-e[0]<=21]
        if k=='g': s.vm.append(set(d))
        elif k=='l': s.lg.append(set(d))
        elif k=='sm': s.lg.append(set(d)|{'#sm'})
    def smwait(s):
        s.L.append('  s_waitcnt lgkmcnt(0)'); s.lg=[]; s.t+=1
    def hzflush(s):
        need=0
        for (t,pk,po,pd,pr,pC,pm) in s.h:
            dist=s.t-t-1
            w={'m':{4:8,8:12}[passes(po)] if pk=='m' else 0,'v':5 if any(x[0]=='s' or x=='vcc' for x in pd) else 2,'g':2 if po.startswith('buffer_store') else 0}.get(pk,1 if 'm0' in pd else 0)
            need=max(need,w-dist)
        if need>0: s.nop(need)
        s.h=[]
    def label(s,n,drain=True):
        s.hzflush()
        if drain: s.waitdrain()
        s.snap[n]=([set(q) for q in s.vm],[set(q) for q in s.lg])
        s.L.append(n+':')
    def waitdrain(s):
        s.wait(0 if s.vm else None,0 if s.lg else None)
    def fit(s,cur,ref,isvm):
        n=len(cur); keep=n
        for i in range(1,n+1):
            for x in cur[-i]:
                js=[j for j in range(1,len(ref)+1) if x in ref[-j]]
                if not js or min(js)>i: keep=min(keep,i-1)
        if keep<n:
            if isvm: s.wait(vm=keep)
            else: s.wait(lg=keep)
    def back(s,br,n):
        a,b=s.snap[n]; s.fit(s.vm,a,True); s.fit(s.lg,b,False); s.hzflush(); s.L.append('  %s %s'%(br,n)); s.t+=1
    def fwd(s,br,n,drain=True):
        if drain: s.waitdrain()
        s.hzflush(); s.L.append('  %s %s'%(br,n)); s.t+=1
    def u(s,p='L'):
        s.uid+=1; return '%s_%d'%(p,s.uid)
    def text(s): return '\n'.join(s.L)+'\n'
def vr(b,n=1,p='v'): return f'{p}{b}' if n==1 else f'{p}[{b}:{b+n-1}]'
def kfoot(name,vgpr=512,acc=256):
    return f""".section .rodata,"a"
.p2align 6
.amdhsa_kernel {name}
  .amdhsa_next_free_vgpr {vgpr}
  .amdhsa_next_free_sgpr 102
  .amdhsa_accum_offset {acc}
  .amdhsa_group_segment_fixed_size 0
  .amdhsa_kernarg_size 152
  .amdhsa_user_sgpr_count 2
  .amdhsa_user_sgpr_kernarg_segment_ptr 1
  .amdhsa_system_sgpr_workgroup_id_x 1
.end_amdhsa_kernel
"""
def _need(s,tag):
    n=None
    for i,q in enumerate(s.vm):
        if tag in q: n=len(s.vm)-1-i
    if n is not None: s.wait(vm=n)
E.need=_need
def _dma(s,x,tag=None):
    s.ins(x)
    if tag: s.vm[-1].add(tag)
E.dma=_dma
def interleave(e,main,side,start=0,every=1):
    j=0
    for i,m in enumerate(main):
        m() if callable(m) else e(m)
        while j<len(side) and i>=start+j*every:
            x=side[j]; x() if callable(x) else e(x); j+=1
    for x in side[j:]:
        x() if callable(x) else e(x)
def srd(e,d,b,size,off=None):
    if off is None:
        e(f's_mov_b32 s{d}, s{b}'); e(f's_mov_b32 s{d+1}, s{b+1}')
    else:
        e(f's_add_u32 s{d}, s{b}, {off}'); e(f's_addc_u32 s{d+1}, s{b+1}, 0')
    e(f's_mov_b32 s{d+2}, {size}'); e(f's_mov_b32 s{d+3}, 0x00020000')
```

```python
from em import *; from lay import *
from kx import softmax,SCALE,LOG2E
PRIV=147456; SC=PRIV+5120
PSZ=32*18432
def W8(F): return vr(8*F,8,'a') if F<32 else vr(80+8*(F-32),8)
def W2(F,i): return vr(8*F+2*i,2,'a') if F<32 else vr(80+8*(F-32)+2*i,2)
f4=lambda b:f'v[{b}:{b+3}]'
def junk(e,x):
    e.L.append('  '+x); e.t+=1; e.vm.append(set())
def team(e):
    e('s_load_dwordx2 s[4:5], s[0:1], 136'); e.smwait(); srd(e,16,4,256)
    e('s_getreg_b32 s10, hwreg(HW_REG_XCC_ID, 0, 4)')
    e('s_cmp_lg_u32 s3, 0'); e.fwd('s_cbranch_scc1','T_WAIT')
    e('s_mov_b64 s[26:27], exec'); e('s_mov_b64 exec, 1')
    e('s_lshl_b32 s25, s10, 2'); e('v_mov_b32 v3, s25'); e('v_mov_b32 v4, 1'); e('v_mov_b32 v5, 1'); e('v_mov_b32 v6, 68')
    e('buffer_atomic_add v4, v3, s[16:19], 0 offen sc0'); e('buffer_atomic_add v5, v6, s[16:19], 0 offen sc0')
    e('v_readfirstlane_b32 s28, v4'); e('v_readfirstlane_b32 s29, v5')
    e('v_mov_b32 v3, 64')
    e('s_cmp_eq_u32 s28, 31'); e.fwd('s_cbranch_scc0','T_NL')
    e('s_add_u32 s30, s10, 1'); e('v_mov_b32 v4, s30'); e('v_mov_b32 v5, 0')
    e('buffer_atomic_cmpswap v[4:5], v3, s[16:19], 0 offen sc0')
    e.label('T_NL'); e('s_mov_b32 s30, 0')
    e.label('T_POLL')
    e('buffer_load_dword v4, v3, s[16:19], 0 offen sc1'); e('v_readfirstlane_b32 s31, v4')
    e('s_cmp_lg_u32 s31, 0'); e.fwd('s_cbranch_scc1','T_DONE')
    e('s_add_u32 s30, s30, 1'); e('s_cmp_lt_u32 s30, 3000'); e.back('s_cbranch_scc1','T_POLL')
    e('v_mov_b32 v4, 100'); e('v_mov_b32 v5, 0'); e('buffer_atomic_cmpswap v[4:5], v3, s[16:19], 0 offen sc0'); e.wait(vm=0)
    e('s_mov_b32 s30, 2990'); e.back('s_branch','T_POLL')
    e.label('T_DONE')
    e('s_mov_b32 s20, 0xffff'); e('s_mov_b32 s35, 0')
    e('s_add_u32 s30, s10, 1'); e('s_cmp_eq_u32 s31, s30'); e('s_cselect_b32 s20, s28, s20')
    e('s_cmp_eq_u32 s31, 100'); e('s_cselect_b32 s20, s29, s20'); e('s_cselect_b32 s35, 1, 0')
    e('v_mov_b32 v4, s20'); e('v_mov_b32 v5, s35'); e('v_mov_b32 v3, 0'); e('ds_write_b64 v3, v[4:5])'.replace(')','')); e.wait(lg=0)
    e('s_mov_b64 exec, s[26:27]')
    e.label('T_WAIT'); e('s_barrier')
    e('v_mov_b32 v3, 0'); e('ds_read_b64 v[4:5], v3'); e('v_readfirstlane_b32 s20, v4'); e('v_readfirstlane_b32 s35, v5'); e.wait(lg=0); e('s_barrier')
def chain_setup(e):
    e('s_load_dwordx2 s[8:9], s[0:1], 144'); e('s_load_dwordx2 s[36:37], s[0:1], 16'); e('s_load_dwordx2 s[38:39], s[0:1], 24')
    e('s_load_dwordx2 s[40:41], s[0:1], 32'); e('s_load_dwordx2 s[42:43], s[0:1], 40'); e('s_load_dwordx2 s[44:45], s[0:1], 8'); e.smwait()
    srd(e,12,8,hex(0x8000000))
    e('v_and_b32 v20, 63, v0'); e('v_lshlrev_b32 v1, 4, v20')
    e('v_lshrrev_b32 v21, 4, v20')
    e('v_and_b32 v22, 15, v20')
    e('v_and_b32 v23, 3, v20'); e('v_lshrrev_b32 v24, 2, v22')
    e('v_mov_b32 v28, 0'); e('v_mov_b32 v29, 0'); e('v_mov_b32 v30, 0'); e('v_mov_b32 v31, 0')
    e('s_mul_i32 s46, s20, 18432'); e('s_mul_i32 s47, s3, 4608'); e('s_add_u32 s46, s46, s47'); e(f's_add_u32 s46, s46, {hex(PB)}')
    return
def st_init(e,ST):
    for b in range(2):
        for i in range(5):
            if i==4: e('s_mov_b32 exec_hi, 0')
            e(f's_add_u32 s47, s46, {b*PSZ+i*1024}'); e(f'buffer_store_dwordx4 v[28:31], v1, s[12:15], s47 offen {ST}')
        e('s_mov_b64 exec, -1')
def gen_chain(e,ST,sfx,fused=False,KST='sc1'):
    L=lambda n:n+sfx
    chain_setup(e); st_init(e,ST)
    e('s_lshr_b32 s48, s20, 2'); e('s_and_b32 s49, s20, 3')
    e('s_mul_i32 s50, s48, 72'); e('v_lshlrev_b32 v25, 1, v20'); e('v_add_u32 v25, s50, v25')
    e('v_lshrrev_b32 v26, 3, v25'); e('v_lshlrev_b32 v26, 7, v26'); e('v_and_b32 v27, 7, v25'); e('v_lshlrev_b32 v27, 1, v27'); e('v_add_u32 v26, v26, v27')
    e('s_and_b32 s50, s49, 1'); e('s_lshl_b32 s50, s50, 2'); e('s_lshr_b32 s51, s49, 1'); e('s_lshl_b32 s51, s51, 1'); e('s_add_u32 s50, s50, s51')
    e('s_and_b32 s51, s3, 1'); e('s_add_u32 s50, s50, s51')
    e('s_lshl_b32 s51, s50, 4'); e('v_add_u32 v16, s51, v26')
    srd(e,4,44,9216)
    e('s_mul_i32 s51, s50, 1152'); e('v_lshlrev_b32 v27, 1, v25'); e('v_add_u32 v27, s51, v27')
    e('s_mov_b32 s52, -1'); e('s_mov_b32 s53, 15')
    e('s_cmp_lt_u32 s3, 2'); e('s_cselect_b64 s[52:53], s[52:53], 0')
    e('s_mov_b64 exec, s[52:53]')
    lab=L('C_NOINIT'); e.fwd('s_cbranch_execz',lab)
    e('buffer_load_dword v32, v27, s[4:7], 0 offen'); e('v_mov_b32 v33, -1')
    e(f's_mov_b32 s47, {hex(MB)}'); e(f'buffer_store_dword v32, v16, s[12:15], s47 offen {ST}')
    e(f's_mov_b32 s47, {hex(MB+9216)}'); e(f'buffer_store_dword v33, v16, s[12:15], s47 offen {ST}')
    e(f's_mov_b32 s47, {hex(MB+2*9216)}'); e(f'buffer_store_dword v33, v16, s[12:15], s47 offen {ST}')
    e.label(lab); e('s_mov_b64 exec, -1')
    e.wait(vm=0); e('s_barrier')
    e('s_cmp_lg_u32 s3, 0'); lab=L('C_NOSIG'); e.fwd('s_cbranch_scc1',lab)
    e('s_mov_b64 exec, 1'); e('v_mov_b32 v32, 1'); e('v_mov_b32 v33, 72'); e('buffer_atomic_add v32, v33, s[16:19], 0 offen'); e('s_mov_b64 exec, -1')
    e.label(lab)
    e('v_and_b32 v34, 1, v21'); e('s_and_b32 s50, s3, 1'); e('s_lshl_b32 s50, s50, 1'); e('s_lshr_b32 s51, s3, 1'); e('s_lshl_b32 s51, s51, 2'); e('s_add_u32 s50, s50, s51')
    e('v_add_u32 v34, s50, v34'); e('v_lshlrev_b32 v34, 1, v34'); e('v_xor_b32 v34, v34, v22'); e('v_lshlrev_b32 v34, 4, v34')
    e('v_lshlrev_b32 v35, 13, v21'); e('v_add_u32 v32, v34, v35')
    e('v_lshrrev_b32 v34, 5, v20'); e('s_and_b32 s50, s3, 1'); e('s_lshl_b32 s50, s50, 1'); e('v_add_u32 v34, s50, v34'); e('v_lshlrev_b32 v34, 1, v34')
    e('v_and_b32 v35, 7, v20'); e('v_xor_b32 v34, v34, v35'); e('v_lshlrev_b32 v34, 4, v34'); e('v_lshrrev_b32 v35, 3, v20'); e('v_mul_u32_u24 v35, 1152, v35'); e('v_add_u32 v33, v34, v35')
    srd(e,56,36,576*8192); srd(e,60,38,576*8192); srd(e,64,40,576*8192); srd(e,68,42,32*128*1152)
    e('s_lshl_b32 s50, s20, 8'); e('s_lshl_b32 s51, s3, 15'); e('s_add_u32 s50, s50, s51')
    e('s_lshl_b32 s51, s3, 10')
    e('s_mul_i32 s72, s20, %d'%(128*1152)); e('s_mul_i32 s73, s3, %d'%(16*1152)); e('s_add_u32 s72, s72, s73')
    e('s_lshl_b32 s73, s3, 11')
    def dmaW(sr,half,buf,tag):
        for j in range(18):
            e(f's_add_u32 s74, s50, {(288*half+16*j)*8192}'); e(f's_add_u32 m0, s51, {buf+j*4096}')
            e.dma(f'buffer_load_dwordx4 v32, s[{sr}:{sr+3}], s74 offen lds',tag)
    def dmaO(kb,buf,tag):
        for cb in range(9):
            for a in range(2):
                e(f's_add_u32 s74, s72, {(64*kb+8*a)*1152+cb*128}'); e(f's_add_u32 m0, s73, {buf+cb*8192+a*1024}')
                e.dma('buffer_load_dwordx4 v33, s[68:71], s74 offen lds',tag)
    e('v_lshrrev_b32 v34, 1, v21'); e('v_lshlrev_b32 v34, 4, v34'); e('v_and_b32 v35, 1, v21'); e('v_lshlrev_b32 v36, 2, v35'); e('v_add_u32 v34, v34, v36')
    e('v_lshrrev_b32 v36, 1, v24'); e('v_lshlrev_b32 v37, 3, v36'); e('v_add_u32 v34, v34, v37'); e('v_and_b32 v37, 1, v24'); e('v_add_u32 v34, v34, v37'); e('v_lshlrev_b32 v34, 8, v34')
    e('v_lshlrev_b32 v35, 1, v35'); e('v_add_u32 v35, v35, v37'); e('v_lshlrev_b32 v36, 2, v36'); e('v_add_u32 v35, v35, v36'); e('v_lshlrev_b32 v35, 1, v35')
    e('v_and_b32 v36, 1, v23'); e('v_lshlrev_b32 v36, 3, v36'); e('v_add_u32 v34, v34, v36'); e('v_lshrrev_b32 v36, 1, v23')
    for ct in range(2):
        e('s_lshl_b32 s74, s3, 2'); e(f's_add_u32 s74, s74, {2*ct}'); e('v_add_u32 v37, s74, v36'); e('v_xor_b32 v37, v37, v35'); e('v_lshlrev_b32 v37, 4, v37'); e(f'v_add_u32 v{10+ct}, v34, v37')
    e('v_and_b32 v34, 1, v21'); e('v_lshlrev_b32 v35, 4, v34'); e('v_lshrrev_b32 v37, 1, v21'); e('v_lshlrev_b32 v37, 3, v37'); e('v_add_u32 v35, v35, v37')
    e('v_lshrrev_b32 v37, 1, v24'); e('v_lshlrev_b32 v39, 2, v37'); e('v_add_u32 v35, v35, v39'); e('v_and_b32 v39, 1, v24'); e('v_add_u32 v35, v35, v39'); e('v_lshlrev_b32 v38, 7, v35')
    e('v_lshlrev_b32 v34, 1, v34'); e('v_add_u32 v39, v34, v37')
    e('v_and_b32 v34, 1, v23'); e('v_lshlrev_b32 v34, 3, v34'); e('v_add_u32 v38, v38, v34'); e('v_lshlrev_b32 v34, 4, v36'); e('v_add_u32 v38, v38, v34')
    def rdW(F0,half,buf):
        for kb in range(9):
            for j2 in range(2):
                row=64*kb+32*j2
                if (row>=288)!=(half==1): continue
                for ct in range(2):
                    for q in range(2):
                        off=buf+(row-288*half+2*q)*256
                        rd_tr(W2(F0+ct*9+kb,2*j2+q),10+ct,off)
    def rd_tr(d,a,off):
        if off<65536: e(f'ds_read_b64_tr_b16 {d}, v{a} offset:{off}')
        else:
            e(f'v_add_u32 v40, {off&~0xffff}, v{a}'); e(f'ds_read_b64_tr_b16 {d}, v40 offset:{off&0xffff}')
    def rdO(kb,buf):
        for tt in range(9):
            e('s_mul_i32 s74, s3, 9'); e(f's_add_u32 s74, s74, {tt}'); e('s_and_b32 s75, s74, 3'); e('s_lshr_b32 s74, s74, 2'); e('s_lshl_b32 s74, s74, 13'); e(f's_add_u32 s74, s74, {buf}')
            e('v_xor_b32 v41, s75, v39'); e('v_lshlrev_b32 v41, 5, v41'); e('v_add_u32 v41, v41, v38'); e('v_add_u32 v41, s74, v41')
            for j2 in range(2):
                for q in range(2): e(f'ds_read_b64_tr_b16 {W2(36+tt*2+kb,2*j2+q)}, v41 offset:{(32*j2+2*q)*128}')
    A,B=0,73728
    seq=[('q',0),('q',1),('k',0),('k',1),('o',0),('o',1),('v',0),('v',1)]
    def issue(i):
        m,hf=seq[i]; buf=A if i%2==0 else B
        if m=='o': dmaO(hf,buf,f'#c{i}')
        else: dmaW({'q':56,'k':60,'v':64}[m],hf,buf,f'#c{i}')
    issue(0); issue(1)
    for i in range(6):
        m,hf=seq[i]; buf=A if i%2==0 else B
        e.need(f'#c{i}'); e('s_barrier')
        if m=='o': rdO(hf,buf)
        else: rdW({'q':0,'k':18}[m],hf,buf)
        e.wait(lg=0); e('s_barrier'); issue(i+2)
    e('v_mov_b32 v2, 0x44444444'); e('v_mov_b32 v34, 0xeeeeeeee'); e('v_cmp_gt_u32 vcc, 8, v22'); e('v_cndmask_b32 v2, v34, v2, vcc')
    e(f's_mul_i32 s74, s3, 1280'); e(f's_add_u32 s74, s74, {PRIV}')
    e('v_and_b32 v34, 1, v21'); e('v_lshlrev_b32 v34, 2, v34'); e('v_lshrrev_b32 v35, 1, v21'); e('v_lshlrev_b32 v35, 1, v35'); e('v_add_u32 v34, v34, v35')
    e('v_mul_u32_u24 v34, 80, v34'); e('v_lshlrev_b32 v35, 2, v22'); e('v_add_u32 v34, v34, v35'); e('v_add_u32 v3, s74, v34')
    e('v_and_b32 v34, 7, v20'); e('v_mul_u32_u24 v34, 80, v34'); e('v_lshlrev_b32 v35, 4, v21'); e('v_add_u32 v34, v34, v35'); e('v_add_u32 v4, s74, v34')
    e('v_and_b32 v34, 1, v24'); e('v_lshlrev_b32 v34, 2, v34'); e('v_lshrrev_b32 v36, 1, v24'); e('v_lshlrev_b32 v36, 1, v36'); e('v_add_u32 v34, v34, v36'); e('v_and_b32 v36, 1, v22'); e('v_add_u32 v34, v34, v36')
    e('v_mul_u32_u24 v34, 80, v34'); e('v_add_u32 v34, v34, v35'); e('v_add_u32 v5, s74, v34'); e('v_add_u32 v5, 640, v5')
    e('v_lshlrev_b32 v34, 3, v21'); e('v_and_b32 v35, 7, v20'); e('v_add_u32 v34, v34, v35')
    e('v_lshlrev_b32 v35, 4, v34'); e(f'v_add_u32 v7, {SC}, v35'); e('s_mul_i32 s75, s3, 1280'); e('v_add_u32 v6, s75, v7')
    e('v_lshlrev_b32 v35, 3, v34'); e(f'v_add_u32 v18, {SC+1024}, v35'); e('v_add_u32 v19, s75, v18')
    e('v_lshlrev_b32 v35, 4, v34'); e('v_add_u32 v8, s74, v35')
    e('v_lshrrev_b32 v35, 5, v20'); e('v_mul_u32_u24 v35, 1280, v35'); e('v_and_b32 v36, 31, v20'); e('v_lshlrev_b32 v36, 4, v36'); e('v_add_u32 v35, v35, v36'); e(f'v_add_u32 v9, {PRIV}, v35')
    e('v_mul_u32_u24 v34, 4608, v21'); e('v_lshlrev_b32 v35, 3, v22'); e('v_add_u32 v34, v34, v35'); e('s_mul_i32 s75, s3, 1152'); e('v_add_u32 v12, s75, v34')
    e('v_add_u32 v14, s74, v1'); e('v_add_u32 v14, 640, v14')
    e('s_and_b32 s75, s3, 1'); e('s_lshl_b32 s75, s75, 3'); e(f's_add_u32 s75, s75, {PRIV+640}'); e('v_add_u32 v15, s75, v1')
    e('v_lshlrev_b32 v17, 2, v20')
    e('v_lshlrev_b32 v13, 6, v20')
    e('s_mov_b32 s21, 0'); e(f's_mov_b32 s22, {hex(MB)}'); e(f's_mov_b32 s23, {hex(MB+9216)}'); e(f's_mov_b32 s24, {hex(MB+18432)}')
    e('s_mul_i32 s25, s20, 18432'); e(f's_add_u32 s25, s25, {hex(PB)}')
    e('s_mul_i32 s26, s49, 4608'); e('s_mul_i32 s74, s48, 576'); e('s_add_u32 s26, s26, s74'); e('s_mul_i32 s74, s3, %d'%(8*18432)); e('s_add_u32 s26, s26, s74'); e(f's_add_u32 s26, s26, {hex(PB)}')
    e('s_mov_b32 s27, 1')
    e('s_lshl_b32 s28, s20, 13'); e('s_lshl_b32 s74, s3, 11'); e('s_add_u32 s28, s28, s74')
    e('s_lshl_b32 s29, s20, 12'); e('s_lshl_b32 s74, s3, 10'); e('s_add_u32 s29, s29, s74'); e(f's_add_u32 s29, s29, {hex(KM)}')
    e('s_lshl_b32 s30, s20, 11'); e('s_lshl_b32 s74, s3, 9'); e('s_add_u32 s30, s30, s74'); e(f's_add_u32 s30, s30, {hex(VM)}')
    e('s_mov_b32 s31, 0x20000')
    e(f's_mov_b32 s68, {hex(SCALE)}'); e(f's_mov_b32 s69, {hex(LOG2E)}'); e('s_mov_b32 s70, 0xfffffffe')
    e('s_mov_b32 s76, 0x00ff00ff'); e('s_mov_b32 s77, s76')
    e('s_mov_b32 s78, -1'); e('s_mov_b32 s79, 15'); e(f's_mov_b32 s80, {PSZ}'); e(f's_mov_b32 s81, {hex((-PSZ)&0xffffffff)}')
    e('v_mov_b32 v33, 72'); e('s_mov_b32 s74, 0')
    e.label(L('C_RDY'))
    e('buffer_load_dword v32, v33, s[16:19], 0 offen sc1'); e('v_readfirstlane_b32 s75, v32'); e('s_add_u32 s74, s74, 1')
    e('s_cmp_ge_u32 s75, 32'); e.fwd('s_cbranch_scc1',L('C_GO')); e('s_cmp_lt_u32 s74, 20000'); e.back('s_cbranch_scc1',L('C_RDY'))
    e.label(L('C_GO')); e.wait(vm=0); e('s_barrier')
    step_loop(e,ST,sfx,fused,KST)
def chk_retry(e,regs4list,offs,name):
    def chk():
        first=True
        for b in regs4list:
            if first: e(f'v_max3_u32 v79, v{b}, v{b+1}, v{b+2}'); e(f'v_max_u32 v79, v79, v{b+3}'); first=False
            else: e(f'v_max3_u32 v79, v79, v{b}, v{b+1}'); e(f'v_max3_u32 v79, v79, v{b+2}, v{b+3}')
        e('v_cmp_eq_u32 vcc, -1, v79')
    chk()
    ok=e.u(name+'ok'); rt=e.u(name+'rt')
    sv=([set(q) for q in e.vm],[set(q) for q in e.lg]); hv=(list(e.h),e.t+1)
    e.L.append(f'  s_cbranch_vccz {ok}')
    e.L.append(rt+':')
    e('s_sub_u32 s31, s31, 1'); e.L.append(f'  s_cbranch_scc1 {ok}_x')
    for b,o in zip(regs4list,offs): e(mload(b,o))
    e.wait(vm=0); chk(); e.L.append(f'  s_cbranch_vccnz {rt}')
    e.L.append(f'  s_branch {ok}'); e.L.append(f'{ok}_x:'); e.L.append('  s_mov_b32 s31, 0'); e.L.append(ok+':')
    e.vm,e.lg=sv; e.h,e.t=hv
def mload(b,kb):
    return f'buffer_load_dwordx4 {f4(b)}, v1, s[12:15], s22 offen offset:{kb*1024} sc1' if kb<4 else f'buffer_load_dwordx4 {f4(b)}, v78, s[12:15], s22 offen offset:{(kb&3)*1024} sc1' if kb<8 else f'buffer_load_dwordx4 {f4(b)}, v77, s[12:15], s22 offen sc1'
def step_loop(e,ST,sfx,fused,KST):
    L=lambda n:n+sfx
    RING=[20,24,28,32]; AQ=[36,40]; AK=[44,48]; AV=[52,56]; SG=[60,68]
    e.label(L('C_STEP'))
    e('v_add_u32 v78, 4096, v1'); e('v_add_u32 v77, 8192, v1')
    for kb in range(4): e(mload(RING[kb],kb))
    for r in range(36,60,2): e(f'v_mov_b64 v[{r}:{r+1}], 0')
    def trV(kb):
        for ct in range(2):
            for j2 in range(2):
                for q in range(2):
                    off=(kb&3)*16384+j2*8192+q*512
                    e(f'ds_read_b64_tr_b16 v[{SG[ct]+4*j2+2*q}:{SG[ct]+4*j2+2*q+1}], v{10+ct} offset:{off}')
    trV(0)
    chk_retry(e,RING,[0,1,2,3],'m')
    sm=lambda D,A,Bm:e(f'v_smfmac_f32_16x16x64_bf16 {f4(D)}, {f4(A)}, {Bm}, v2')
    for kb in range(9):
        a=RING[kb&3]
        if kb>=4: chk_retry(e,[a],[kb],'m')
        sm(AQ[0],a,W8(kb)); sm(AK[0],a,W8(18+kb)); sm(AQ[1],a,W8(9+kb)); sm(AK[1],a,W8(27+kb))
        for ct in range(2): sm(AV[ct],a,f'v[{SG[ct]}:{SG[ct]+7}]')
        if kb<8:
            if (kb+1)&3==0:
                for ct in range(2): e(f'v_add_u32 v{10+ct}, 0x10000, v{10+ct}')
            trV(kb+1)
        if kb+4<9: e(mload(a,kb+4))
        elif kb==5: e(f'buffer_load_dwordx4 {f4(24)}, v1, s[12:15], s28 offen')
        elif kb==6: e(f'buffer_load_dwordx4 {f4(28)}, v1, s[12:15], s28 offen offset:1024')
        elif kb==7: e(f's_add_u32 s74, s28, {hex(VX)}'); e(f'buffer_load_dwordx4 {f4(32)}, v1, s[12:15], s74 offen')
        elif kb==8: e(f'buffer_load_dwordx4 {f4(20)}, v1, s[12:15], s74 offen offset:1024')
    for ct in range(2): e(f'v_subrev_u32 v{10+ct}, 0x20000, v{10+ct}')
    e(f's_add_u32 s74, s28, {1<<18}'); e(f's_min_u32 s74, s74, {hex(0x1000000-2048)}')
    e('s_mov_b32 exec_hi, 0'); junk(e,'buffer_load_dword v0, v13, s[12:15], s74 offen'); e(f's_add_u32 s74, s74, {hex(VX)}'); junk(e,'buffer_load_dword v0, v13, s[12:15], s74 offen'); e('s_mov_b64 exec, -1')
    def hadd(D):
        e(f'v_permlane32_swap_b32 v{D}, v{D+2}'); e(f'v_permlane32_swap_b32 v{D+1}, v{D+3}')
    for D in AQ+AK+AV: hadd(D)
    for D in AQ+AK+AV: e(f'v_add_f32 v{D}, v{D}, v{D+2}'); e(f'v_add_f32 v{D+1}, v{D+1}, v{D+3}')
    e(f'v_cvt_pk_bf16_f32 v60, v{AQ[0]}, v{AQ[1]}'); e(f'v_cvt_pk_bf16_f32 v61, v{AQ[0]+1}, v{AQ[1]+1}')
    e(f'v_cvt_pk_bf16_f32 v62, v{AK[0]}, v{AK[1]}'); e(f'v_cvt_pk_bf16_f32 v63, v{AK[0]+1}, v{AK[1]+1}')
    e('ds_write_b32 v3, v60'); e('ds_write_b32 v3, v61 offset:80'); e('ds_write_b32 v3, v62 offset:640'); e('ds_write_b32 v3, v63 offset:720')
    e(f'ds_read_b128 {f4(64)}, v4'); e(f'ds_read_b128 {f4(68)}, v5')
    e(f'v_cvt_pk_bf16_f32 v72, v{AV[0]}, v{AV[0]+1}'); e(f'v_cvt_pk_bf16_f32 v58, v{AV[1]}, v{AV[1]+1}'); e('v_mov_b32 v56, v72'); e('v_mov_b32 v57, 0'); e('v_mov_b32 v59, 0')
    e(f'buffer_store_dword v56, v17, s[12:15], s30 offen {KST}'); e(f'buffer_store_dword v58, v17, s[12:15], s30 offen offset:256 {KST}')
    e(f'buffer_store_dwordx4 {f4(68)}, v1, s[12:15], s29 offen {KST}')
    e('s_cmp_eq_u32 s21, 63'); e.fwd('s_cbranch_scc1',L('C_END'),drain=False)
    e(f'v_mfma_f32_16x16x32_bf16 {f4(36)}, {f4(24)}, {f4(64)}, 0'); e(f'v_mfma_f32_16x16x32_bf16 {f4(40)}, {f4(28)}, {f4(64)}, 0'); e(f'v_mfma_f32_16x16x32_bf16 {f4(44)}, {f4(68)}, {f4(64)}, 0')
    e('s_mov_b64 exec, s[76:77]')
    e(f'ds_write_b128 v6, {f4(36)}'); e(f'ds_write_b128 v6, {f4(40)} offset:512'); e('ds_write_b64 v19, v[44:45]')
    e('s_mov_b64 exec, -1')
    e.wait(lg=0); e('s_barrier')
    SR=[36,46,60,70]
    for w in range(4):
        b=SR[w]; e(f'ds_read_b128 {f4(b)}, v7 offset:{w*1280}'); e(f'ds_read_b128 {f4(b+4)}, v7 offset:{w*1280+512}'); e(f'ds_read_b64 v[{b+8}:{b+9}], v18 offset:{w*1280}')
    for i in range(10): e(f'v_add_f32 v{36+i}, v{36+i}, v{46+i}')
    for i in range(10): e(f'v_add_f32 v{60+i}, v{60+i}, v{70+i}')
    for i in range(10): e(f'v_add_f32 v{36+i}, v{36+i}, v{60+i}')
    softmax(e,list(range(36,46)),[None]*10,46,'s68','s69')
    for i in range(4): e(f'v_cvt_pk_bf16_f32 v{50+i}, v{36+2*i}, v{37+2*i}')
    e('v_cvt_pk_bf16_f32 v54, v44, v45'); e('v_mov_b32 v55, 0')
    e(f'v_mfma_f32_16x16x32_bf16 {f4(24)}, {f4(32)}, {f4(50)}, 0'); e(f'v_mfma_f32_16x16x32_bf16 {f4(28)}, {f4(20)}, {f4(50)}, 0')
    e(f'v_mfma_f32_16x16x16_bf16 {f4(24)}, v[56:57], v[54:55], {f4(24)}'); e(f'v_mfma_f32_16x16x16_bf16 {f4(28)}, v[58:59], v[54:55], {f4(28)}')
    WA=[40+4*t for t in range(9)]
    for r in list(range(40,50,2))+list(range(60,76,2)): e(f'v_mov_b64 v[{r}:{r+1}], 0')
    for i in range(4): e(f'v_cvt_pk_bf16_f32 v{36+i}, v{24+2*i}, v{25+2*i}')
    e(f'ds_write_b128 v8, {f4(36)}')
    for r in range(50,60,2): e(f'v_mov_b64 v[{r}:{r+1}], 0')
    e.wait(lg=0); e('s_barrier')
    e(f'ds_read_b128 {f4(20)}, v9'); e(f'ds_read_b128 {f4(24)}, v9 offset:2560')
    for kb in range(2):
        for t in range(9): sm(WA[t],20+4*kb,W8(36+2*t+kb))
    e('v_mov_b32 v36, s27')
    for t in range(9): hadd(WA[t])
    for t in range(9):
        D=WA[t]; e(f'v_add_f32 v{D}, v{D}, v{D+2}'); e(f'v_add_f32 v{D+1}, v{D+1}, v{D+3}'); e(f'v_and_or_b32 v{D}, v{D}, s70, v36')
        e(f'buffer_store_dwordx2 v[{D}:{D+1}], v12, s[12:15], s25 offen offset:{t*128} {ST}')
    if fused: pass
    e.wait(vm=0)
    def rl():
        e('s_mov_b64 exec, s[78:79]')
        for i in range(8):
            e(f's_add_u32 s74, s26, {i*18432}'); e(f'buffer_load_dwordx4 {f4(20+4*i)}, v1, s[12:15], s74 offen sc1')
        e('s_mov_b64 exec, -1')
    def rchk(lab):
        a=e.u('rp'); b=e.u('rq')
        e.wait(vm=0); e('s_cmp_eq_u32 s27, 0'); e.L.append(f'  s_cbranch_scc1 {a}')
        regs=[20+4*i+j for i in range(8) for j in(0,2)]
        e(f'v_bitop3_b32 v60, v{regs[0]}, v{regs[1]}, v{regs[2]} bitop3:0x80')
        for i in range(3,15,2): e(f'v_bitop3_b32 v60, v60, v{regs[i]}, v{regs[i+1]} bitop3:0x80')
        e(f'v_and_b32 v60, v60, v{regs[15]}'); e('v_not_b32 v60, v60'); e.L.append(f'  s_branch {b}'); e.L.append(a+':')
        e(f'v_or3_b32 v60, v{regs[0]}, v{regs[1]}, v{regs[2]}')
        for i in range(3,15,2): e(f'v_or3_b32 v60, v60, v{regs[i]}, v{regs[i+1]}')
        e(f'v_or_b32 v60, v60, v{regs[15]}'); e.L.append(b+':'); e.h=[]
        e('v_and_b32 v60, 1, v60'); e('v_cmp_eq_u32 vcc, 1, v60'); e('s_and_b64 vcc, vcc, s[78:79]')
    rt=e.u('rr'); ok=e.u('ro')
    e.L.append(rt+':'); rl(); rchk(rt); e.L.append(f'  s_cbranch_vccz {ok}')
    e('s_sub_u32 s31, s31, 1'); e.L.append(f'  s_cbranch_scc0 {rt}'); e('s_mov_b32 s31, 0'); e.L.append(ok+':'); e.h=[]
    for st in (16,8,4):
        for b in range(20,20+st,2*st if False else 1):
            if b-20<st and b+st<52 and (b-20)<st: e(f'v_add_f32 v{b}, v{b}, v{b+st}')
    e('v_mov_b32 v24, v20'); e('v_mov_b32 v25, v22'); e('v_mov_b32 v26, v21'); e('v_mov_b32 v27, v23')
    e('s_mov_b64 exec, s[78:79]'); e(f'ds_write_b128 v14, {f4(24)}'); e('s_mov_b64 exec, -1')
    e.wait(lg=0); e('s_barrier')
    nf=e.u('nf'); e('s_cmp_ge_u32 s3, 2'); e.L.append(f'  s_cbranch_scc1 {nf}')
    for w in range(4): e(f'ds_read_b64 v[{20+2*w}:{21+2*w}], v15 offset:{w*1280}')
    e('v_add_f32 v20, v20, v22'); e('v_add_f32 v21, v21, v23'); e('v_add_f32 v24, v24, v26'); e('v_add_f32 v25, v25, v27'); e('v_add_f32 v20, v20, v24'); e('v_add_f32 v21, v21, v25')
    e('v_cvt_pk_bf16_f32 v20, v20, v21'); e('v_mov_b32 v21, -1')
    e('s_mov_b64 exec, s[78:79]')
    e(f'buffer_store_dword v20, v16, s[12:15], s23 offen {ST}'); e(f'buffer_store_dword v21, v16, s[12:15], s24 offen {ST}')
    e('s_mov_b64 exec, -1')
    e.L.append(nf+':'); e.h=[]
    e('s_mov_b32 s74, s22'); e('s_mov_b32 s22, s23'); e('s_mov_b32 s23, s24'); e('s_mov_b32 s24, s74')
    e('s_bitcmp1_b32 s21, 0'); e('s_cselect_b32 s74, s81, s80')
    e('s_add_u32 s25, s25, s74'); e('s_add_u32 s26, s26, s74')
    e('s_bitcmp1_b32 s21, 0'); e('s_cselect_b32 s74, 1, 0'); e('s_xor_b32 s27, s27, s74')
    e(f's_add_u32 s28, s28, {1<<18}'); e(f's_add_u32 s29, s29, {1<<17}'); e(f's_add_u32 s30, s30, {1<<16}')
    e('s_add_u32 s21, s21, 1')
    e.vm=[set()];
    e.snap[L('C_STEP')]=([],[])
    e.hzflush(); e.L.append(f'  s_branch {L("C_STEP")}'); e.vm=[]; e.lg=[]
    e.label(L('C_END'))
```

```python
from em import *; from lay import *
def wreg(f): return vr(4*f,4,'a') if f<64 else vr(224+4*(f-64),4)
def wsub(f,q):
    b=4*f+2*q
    return vr(b,2,'a') if f<64 else vr(224+b-256,2)
def gen_P(e,task='s40',wave='s3',st='',done=None):
    e(f's_lshr_b32 s41, {task}, 2'); e(f's_and_b32 s42, {task}, 3')
    e('s_lshr_b32 s43, s41, 4')
    e('s_lshl_b32 s44, s43, 3'); e('s_add_u32 s44, s44, 16')
    e('s_load_dwordx2 s[4:5], s[0:1], 0'); e('s_load_dwordx2 s[8:9], s[0:1], 144')
    e('s_add_u32 s46, s0, s44'); e('s_addc_u32 s47, s1, 0'); e('s_load_dwordx2 s[6:7], s[46:47], 0')
    e.smwait()
    e('s_and_b32 s45, s41, 15'); e('s_lshl_b32 s46, s45, 9')
    srd(e,12,4,2048*1152)
    srd(e,16,6,576*8192)
    e('s_mov_b32 s47, 0x2000000'); e('s_cmp_eq_u32 s43, 1'); e('s_cselect_b32 s47, 0, s47')
    e('s_cmp_eq_u32 s43, 2'); e('s_cselect_b32 s47, 0x1000000, s47')
    srd(e,20,8,0x1000000,off='s47')
    srd(e,24,8,0x10000,off=hex(DUM))
    e('v_and_b32 v1, 63, v0')
    e('v_lshrrev_b32 v4, 5, v1'); e('v_and_b32 v5, 31, v1')
    for p in range(2):
        e(f'v_add_u32 v6, {2*p}, v4'); e('v_lshlrev_b32 v7, 2, v6'); e('v_xor_b32 v7, v7, v5')
        e('v_lshlrev_b32 v7, 4, v7'); e(f'v_lshlrev_b32 v6, 13, v6'); e(f'v_add_u32 v{2+p}, v6, v7')
    e(f's_mul_i32 s48, {wave}, {36*8192}'); e('s_add_u32 s48, s48, s46')
    e(f's_mul_i32 s49, {wave}, {18*1024}')
    def wdma(j):
        buf=(j&1)*73728
        for i in range(18):
            e(f's_add_u32 s50, s48, {(144*j+4*(i>>1))*8192}'); e(f's_add_u32 m0, s49, {buf+i*1024}')
            e.dma(f'buffer_load_dwordx4 v{2+(i&1)}, s[16:19], s50 offen lds',f'#w{j}')
    wdma(0); wdma(1)
    e('v_and_b32 v6, 15, v1'); e('v_lshrrev_b32 v6, 2, v6')
    e('v_lshrrev_b32 v7, 5, v1'); e('v_lshlrev_b32 v7, 3, v7'); e('v_add_u32 v7, v7, v6'); e('v_lshlrev_b32 v7, 9, v7')
    e('v_lshrrev_b32 v8, 4, v1'); e('v_and_b32 v8, 1, v8'); e('v_lshlrev_b32 v8, 1, v8')
    e('v_and_b32 v9, 3, v1'); e('v_lshrrev_b32 v10, 1, v9'); e('v_add_u32 v8, v8, v10')
    e(f's_lshl_b32 s50, {wave}, 3'); e('v_add_u32 v8, s50, v8')
    e('v_lshlrev_b32 v6, 2, v6'); e('v_and_b32 v9, 1, v9'); e('v_lshlrev_b32 v9, 3, v9'); e('v_add_u32 v7, v7, v9')
    e('v_xor_b32 v10, v8, v6'); e('v_lshlrev_b32 v10, 4, v10'); e('v_add_u32 v4, v7, v10')
    e('v_add_u32 v8, 4, v8'); e('v_xor_b32 v10, v8, v6'); e('v_lshlrev_b32 v10, 4, v10'); e('v_add_u32 v5, v7, v10')
    e(f's_mul_i32 s50, {wave}, 576'); e('s_mov_b32 s51, 58255')
    for i in range(9):
        e(f'v_add_u32 v6, s50, v1'); e(f'v_add_u32 v6, {64*i}, v6')
        e('v_mul_lo_u32 v7, v6, s51'); e('v_lshrrev_b32 v7, 22, v7')
        e('v_mul_u32_u24 v8, 72, v7'); e('v_sub_u32 v8, v6, v8')
        e('v_lshrrev_b32 v9, 1, v7'); e('v_and_b32 v9, 7, v9'); e('v_xor_b32 v8, v8, v9')
        e('v_mul_u32_u24 v7, 1152, v7'); e('v_lshlrev_b32 v8, 4, v8'); e(f'v_add_u32 v{16+i}, v7, v8')
    e('v_and_b32 v6, 31, v1'); e('v_lshrrev_b32 v7, 5, v1'); e('v_lshrrev_b32 v25, 1, v6'); e('v_and_b32 v25, 7, v25')
    e('v_mul_u32_u24 v6, 1152, v6')
    for k in range(4):
        e(f'v_add_u32 v26, {2*k}, v7'); e('v_xor_b32 v26, v26, v25'); e('v_lshlrev_b32 v26, 4, v26')
        e(f'v_add_u32 v{8+k}, v6, v26'); e(f'v_add_u32 v{12+k}, {2*36864}, v{8+k}')
    e('v_and_b32 v6, 31, v1'); e('v_lshrrev_b32 v7, 4, v6'); e('v_lshlrev_b32 v7, 10, v7'); e('v_and_b32 v6, 15, v6'); e('v_lshlrev_b32 v6, 4, v6')
    e('v_add_u32 v6, v6, v7'); e('v_lshrrev_b32 v7, 5, v1'); e('v_lshlrev_b32 v7, 8, v7'); e('v_add_u32 v25, v6, v7')
    e('s_lshl_b32 s52, s45, 14'); e(f's_lshl_b32 s53, {wave}, 12'); e('s_add_u32 s52, s52, s53')
    for j in range(4):
        e.need(f'#w{j}'); e('s_barrier')
        buf=(j&1)*73728
        for ks in range(9):
            for ct in range(2):
                f=(9*j+ks)*2+ct
                for q in range(2):
                    off=buf+(16*ks+4*q)*512
                    if off<65536: e(f'ds_read_b64_tr_b16 {wsub(f,q)}, v{4+ct} offset:{off}')
                    else:
                        e(f'v_add_u32 v6, {off&~0x7fff}, v{4+ct}'); e(f'ds_read_b64_tr_b16 {wsub(f,q)}, v6 offset:{off&0x7fff}')
        e.wait(lg=0)
        if j<2:
            e('s_barrier'); wdma(j+2)
    e('s_barrier')
    e(f's_mul_i32 s49, {wave}, 9216')
    def xdma(buf,sseg):
        L=[]
        for i in range(9):
            L.append(f's_add_u32 m0, s49, {buf*36864+i*1024}')
            L.append((lambda i=i:e.dma(f'buffer_load_dwordx4 v{16+i}, s[12:15], {sseg} offen lds',f'#x{buf}')))
        return L
    SEG=32*1152
    e(f's_mul_i32 s54, s42, {SEG}')
    for b in range(3):
        for x in xdma(b,'s54'): x() if callable(x) else e(x)
        e(f's_add_u32 s54, s54, {4*SEG}')
    e('s_lshl_b32 s55, s42, 18'); e('s_add_u32 s55, s55, s52')
    e('s_mov_b32 s57, 0')
    ACC=[32,64]; XF=96
    def body(isV,lab):
        e('s_mov_b32 s56, 0'); e('s_mov_b32 s58, 1')
        for i in range(4): e(f's_mov_b32 s{28+i}, s{24+i}')
        e.label(lab,drain=False)
        for u in range(4):
            acc=ACC[u&1]; pacc=ACC[(u&1)^1]; buf=u
            e.need(f'#x{buf}'); e('s_barrier')
            side=[]
            for ct in range(2):
                a=pacc+16*ct; t=112+8*ct
                if not isV: prs=[(r,r+8) for r in range(8)]
                else: prs=[(0,1),(2,3),(8,9),(10,11),(4,5),(6,7),(12,13),(14,15)]
                for i,(x,y) in enumerate(prs): side.append(f'v_cvt_pk_bf16_f32 v{t+i}, v{a+x}, v{a+y}')
                side.append(f'buffer_store_dwordx4 v[{t}:{t+3}], v25, s[28:31], s56 offen offset:{ct*2048} {st}')
                side.append(f'buffer_store_dwordx4 v[{t+4}:{t+7}], v25, s[28:31], s56 offen offset:{ct*2048+512} {st}')
            if done: side+=done(u)
            side.append('s_min_u32 s59, s54, %d'%(63*SEG))
            side+=xdma((u+3)&3,'s59')
            side.append(f's_add_u32 s54, s54, {4*SEG}')
            main=[]
            def rd(ks):
                ab=(8 if buf<2 else 12)+(ks&3); off=(buf&1)*36864+(ks>>2)*128
                return f'ds_read_b128 v[{XF+4*(ks&3)}:{XF+4*(ks&3)+3}], v{ab} offset:{off}'
            for ks in range(3): e(rd(ks))
            for ks in range(36):
                if ks+3<36: main.append(rd(ks+3))
                xf=f'v[{XF+4*(ks&3)}:{XF+4*(ks&3)+3}]'
                for ct in range(2):
                    D=f'v[{acc+16*ct}:{acc+16*ct+15}]'; Cc=D if ks else '0'
                    w=wreg(ks*2+ct)
                    main.append(f'v_mfma_f32_32x32x16_bf16 {D}, {xf}, {w}, {Cc}' if isV else f'v_mfma_f32_32x32x16_bf16 {D}, {w}, {xf}, {Cc}')
            interleave(e,main,side,start=8,every=2)
            e('s_mov_b32 s56, s55'); e(f's_add_u32 s55, s55, {4<<18}')
            if u==0:
                for i in range(4): e(f's_mov_b32 s{28+i}, s{20+i}')
        e('s_add_u32 s57, s57, 1'); e('s_cmp_lt_u32 s57, 4')
        e.back('s_cbranch_scc1',lab)
        for ct in range(2):
            a=ACC[1]+16*ct; t=112+8*ct
            prs=[(r,r+8) for r in range(8)] if not isV else [(0,1),(2,3),(8,9),(10,11),(4,5),(6,7),(12,13),(14,15)]
            for i,(x,y) in enumerate(prs): e(f'v_cvt_pk_bf16_f32 v{t+i}, v{a+x}, v{a+y}')
            e(f'buffer_store_dwordx4 v[{t}:{t+3}], v25, s[28:31], s56 offen offset:{ct*2048} {st}')
            e(f'buffer_store_dwordx4 v[{t+4}:{t+7}], v25, s[28:31], s56 offen offset:{ct*2048+512} {st}')
        e.waitdrain()
    lv=e.u('P_V'); le=e.u('P_E')
    e('s_cmp_eq_u32 s43, 2');
    sv=( [set(q) for q in e.vm],[set(q) for q in e.lg])
    e.fwd('s_cbranch_scc1',lv,drain=False)
    body(False,e.u('P_LQ')); e.fwd('s_branch',le)
    e.L.append(lv+':'); e.vm,e.lg=sv; e.h=[]
    body(True,e.u('P_LV'))
    e.label(le)
```

```python
from em import *; from lay import *
WSZ=39552; CP=4176; UO=33408
L0=[0,64,128,192,256,384,512,768,1024,1536,2048]
f4=lambda b:f'v[{b}:{b+3}]'
def gen_S(e,task='s40',wave='s3',st=''):
    for i,o in enumerate((64,72,80,88,96,104)): e(f's_load_dwordx2 s[{44+2*i}:{45+2*i}], s[0:1], {o}')
    e('s_load_dwordx2 s[56:57], s[0:1], 112'); e('s_load_dwordx2 s[58:59], s[0:1], 120'); e('s_load_dwordx2 s[60:61], s[0:1], 56'); e('s_load_dwordx2 s[62:63], s[0:1], 128')
    e.smwait()
    e(f's_lshl_b32 s41, {task}, 2'); e(f's_add_u32 s41, s41, {wave}')
    e(f's_mul_i32 s42, {wave}, {WSZ}')
    e('v_and_b32 v1, 63, v0')
    e('s_lshl_b32 s43, s41, 8'); e('v_lshlrev_b32 v2, 1, v1')
    for i in range(6):
        srd(e,4,44+2*i,576*256)
        e(f'buffer_load_ushort v{10+2*i}, v2, s[4:7], s43 offen'); e(f'buffer_load_ushort v{11+2*i}, v2, s[4:7], s43 offen offset:128')
    srd(e,4,56,1152); e('s_lshl_b32 s43, s41, 1'); e('v_mov_b32 v3, s43'); e('buffer_load_ushort v8, v3, s[4:7], 0 offen')
    e('s_mov_b32 s64, 0x3fb8aa3b'); e('s_mov_b32 s65, 0x3e22f983')
    e('v_lshlrev_b32 v8, 16, v8'); e('v_mul_f32 v8, s64, v8'); e('v_exp_f32 v8, v8'); e('v_cvt_pk_bf16_f32 v8, v8, v8'); e('v_lshlrev_b32 v8, 16, v8')
    for r in range(10,22): e(f'v_lshlrev_b32 v{r}, 16, v{r}')
    e('v_mul_u32_u24 v4, 96, v1'); e('v_add_u32 v4, s42, v4')
    for hf in range(2):
        Ar,Ai,Br,Bi,Cr,Ci=[10+2*i+hf for i in range(6)]
        e(f'v_mul_f32 v{Ar}, v8, v{Ar}'); e(f'v_mul_f32 v{Ai}, v8, v{Ai}'); e(f'v_mul_f32 v{Br}, v8, v{Br}'); e(f'v_mul_f32 v{Bi}, v8, v{Bi}')
        e(f'v_mul_f32 v24, v{Cr}, v{Br}'); e(f'v_fma_f32 v24, -v{Ci}, v{Bi}, v24'); e(f'v_mul_f32 v25, v{Cr}, v{Bi}'); e(f'v_fma_f32 v25, v{Ci}, v{Br}, v25')
        e(f'v_mul_f32 v32, s64, v{Ar}'); e(f'v_mul_f32 v33, s65, v{Ai}')
        for c,l0 in enumerate(L0):
            d=34+2*c
            if l0==0: e(f'v_mov_b32 v{d}, v24'); e(f'v_mov_b32 v{d+1}, v25'); continue
            e(f'v_mul_f32 v26, {float(l0)}, v32'.replace(str(float(l0)),hex(fbits(l0)))); e('v_exp_f32 v26, v26')
            e(f'v_mul_f32 v27, {hex(fbits(l0))}, v33'); e('v_fract_f32 v27, v27'); e('v_cos_f32 v28, v27'); e('v_sin_f32 v29, v27')
            e('v_mul_f32 v28, v28, v26'); e('v_mul_f32 v29, v29, v26')
            e(f'v_mul_f32 v{d}, v24, v28'); e(f'v_fma_f32 v{d}, -v25, v29, v{d}'); e(f'v_mul_f32 v{d+1}, v24, v29'); e(f'v_fma_f32 v{d+1}, v25, v28, v{d+1}')
        for i in range(6): e(f'ds_write_b128 v4, {f4(32+4*i)} offset:{hf*6144+16*i}')
    e.wait(lg=0)
    e('v_cvt_f32_u32 v5, v1'); e('v_mov_b32 v6, s42')
    for c in range(11): e(f'v_mov_b32 v{60+c}, 0')
    T=[80,104]
    def rdT(b,off):
        for i in range(6): e(f'ds_read_b128 {f4(b+4*i)}, v6 offset:{off+16*i}')
    rdT(T[0],0); e('s_mov_b32 s66, 0')
    lab=e.u('S_M'); e.label(lab,drain=False)
    for u in range(2):
        b=T[u]
        rdT(T[u^1],96*(u+1))
        e(f'v_mul_f32 v26, v{b}, v5'); e(f'v_mul_f32 v27, v{b+1}, v5'); e('v_exp_f32 v26, v26'); e('v_fract_f32 v27, v27'); e('v_cos_f32 v28, v27'); e('v_sin_f32 v29, v27')
        e('v_mul_f32 v28, v28, v26'); e('v_mul_f32 v29, v29, v26')
        for c in range(11):
            if c in(4,6,8):
                e('v_mul_f32 v30, v29, v29'); e('v_mul_f32 v31, v28, v29'); e('v_fma_f32 v28, v28, v28, -v30'); e('v_add_f32 v29, v31, v31')
            e(f'v_fma_f32 v{60+c}, v{b+2+2*c}, v28, v{60+c}'); e(f'v_fma_f32 v{60+c}, -v{b+3+2*c}, v29, v{60+c}')
    e('v_add_u32 v6, 192, v6'); e('s_add_u32 s66, s66, 2'); e('s_cmp_lt_u32 s66, 128'); e.back('s_cbranch_scc1',lab)
    e.waitdrain()
    e('v_lshlrev_b32 v7, 2, v1'); e('v_add_u32 v7, s42, v7')
    for c in range(11): e(f'ds_write_b32 v7, v{60+c} offset:{UO+c*256}')
    e('v_mov_b32 v9, 0'); e('s_mov_b64 exec, 0xffffff')
    for k in range(8): e(f'ds_write_b32 v7, v9 offset:{k*CP+4080}')
    e('s_mov_b64 exec, -1'); e.wait(lg=0)
    e('v_lshlrev_b32 v10, 1, v1'); e('v_sub_u32 v10, s42, v10')
    for i in range(32):
        l0=64*i
        if l0<256: e(f'ds_read_b32 v{20+(i&3)}, v7 offset:{UO+l0*4}')
        else:
            sh=1 if l0<512 else 2 if l0<1024 else 3; st0=256<<(sh-1); jb=128+128*sh
            e(f'v_add_u32 v11, {l0}, v1'); e('v_cvt_f32_u32 v11, v11'); e('v_cvt_pk_bf16_f32 v11, v11, v11'); e('v_lshlrev_b32 v11, 16, v11'); e('v_cvt_u32_f32 v11, v11')
            e(f'v_subrev_u32 v11, {st0}, v11'); e(f'v_lshrrev_b32 v11, {sh}, v11'); e('v_lshlrev_b32 v11, 2, v11'); e('v_add_u32 v11, s42, v11')
            e(f'ds_read_b32 v{20+(i&3)}, v11 offset:{UO+jb*4}')
        k=20+(i&3); h=24+2*(i&1)
        e(f'v_cvt_pk_bf16_f32 v{h}, v{k}, v{k}'); e(f'v_lshlrev_b32 v12, 16, v{h}'); e(f'v_sub_f32 v12, v{k}, v12'); e(f'v_cvt_pk_bf16_f32 v{h+1}, v12, v12')
        e(f'v_add_u32 v13, {4096-2*l0}, v10')
        for c in range(4):
            e(f'ds_write_b16 v13, v{h} offset:{c*4174}'); e(f'ds_write_b16 v13, v{h+1} offset:{c*4174+4*CP}')
    e.wait(lg=0); e('s_barrier')
    e('v_mov_b32 v20, 0'); e('v_mov_b32 v21, 0'); e('v_mov_b32 v22, 0'); e('v_mov_b32 v23, 0')
    e('v_lshlrev_b32 v14, 4, v1'); e('v_add_u32 v14, s42, v14')
    e(f'ds_write_b128 v14, {f4(20)} offset:{UO}'); e(f'ds_write_b128 v14, {f4(20)} offset:{UO+1024}')
    srd(e,4,60,2048*1152)
    e('v_mul_u32_u24 v15, 1152, v1'); e(f's_mul_i32 s43, {wave}, {512*1152}'); e(f's_lshl_b32 s66, {task}, 3'); e('s_add_u32 s43, s43, s66')
    for i in range(8):
        e(f's_add_u32 s67, s43, {i*64*1152}'); e(f'buffer_load_dwordx2 v[{32+2*i}:{33+2*i}], v15, s[4:7], s67 offen')
    e(f's_lshl_b32 s67, {wave}, 10'); e('v_lshlrev_b32 v16, 1, v1'); e('v_add_u32 v16, s67, v16'); e(f'v_add_u32 v16, {UO+2048}, v16')
    e(f'v_add_u32 v17, {2*WSZ}, v16')
    for i in range(8):
        e(f'ds_write_b16 v16, v{32+2*i} offset:{i*128}'); e(f'ds_write_b16_d16_hi v16, v{32+2*i} offset:{WSZ+i*128}')
        e(f'ds_write_b16 v17, v{33+2*i} offset:{i*128}'); e(f'ds_write_b16_d16_hi v17, v{33+2*i} offset:{WSZ+i*128}')
    e.wait(lg=0); e('s_barrier')
    e('v_and_b32 v20, 31, v1'); e('v_lshrrev_b32 v21, 5, v1'); e('v_sub_u32 v22, 0, v20'); e('v_and_b32 v22, 3, v22')
    e(f'v_mul_u32_u24 v23, {CP-2}, v22'); e('v_lshlrev_b32 v24, 1, v20'); e('v_sub_u32 v23, v23, v24'); e('v_lshlrev_b32 v24, 4, v21'); e('v_add_u32 v23, v23, v24')
    e(f'v_add_u32 v23, {4096-32*14}, v23'); e('v_add_u32 v18, s42, v23'); e(f'v_add_u32 v19, {4*CP}, v18')
    e('v_lshlrev_b32 v23, 6, v20'); e('v_add_u32 v23, v23, v24'); e(f'v_add_u32 v23, {UO+2048-32*14}, v23'); e('v_add_u32 v25, s42, v23')
    for r in range(128,160): e(f'v_mov_b32 v{r}, 0')
    def grp(both,lab,n):
        e('s_mov_b32 s66, 0');
        def ld(t):
            b=32+16*(t&3); o=15-t
            e(f'ds_read2_b64 {f4(b)}, v18 offset0:{4*o} offset1:{4*o+1}'); e(f'ds_read2_b64 {f4(b+4)}, v19 offset0:{4*o} offset1:{4*o+1}')
            e(f'ds_read_b128 {f4(b+8)}, v25 offset:{32*o+2048}')
            if both: e(f'ds_read_b128 {f4(b+12)}, v25 offset:{32*o}')
        e.label(lab)
        for t in range(2): ld(t)
        for t in range(16):
            if t+2<16: ld(t+2)
            b=32+16*(t&3)
            e(f'v_mfma_f32_32x32x16_bf16 v[144:159], {f4(b)}, {f4(b+8)}, v[144:159]')
            if both: e(f'v_mfma_f32_32x32x16_bf16 v[128:143], {f4(b)}, {f4(b+12)}, v[128:143]')
            e(f'v_mfma_f32_32x32x16_bf16 v[144:159], {f4(b+4)}, {f4(b+8)}, v[144:159]')
            if both: e(f'v_mfma_f32_32x32x16_bf16 v[128:143], {f4(b+4)}, {f4(b+12)}, v[128:143]')
        for r in(18,19,25): e(f'v_subrev_u32 v{r}, 512, v{r}')
        e('s_add_u32 s66, s66, 1'); e(f's_cmp_lt_u32 s66, {n}'); e.back('s_cbranch_scc1',lab)
    grp(True,e.u('S_C'),4); grp(False,e.u('S_D'),4)
    e.waitdrain(); e.hzflush(); e('s_barrier')
    e('v_lshlrev_b32 v23, 8, v20'); e('v_lshlrev_b32 v24, 5, v21'); e('v_add_u32 v23, v23, v24'); e(f's_lshl_b32 s67, {wave}, 1'); e('v_add_u32 v23, s67, v23')
    for ct in range(2):
        for r in range(0,16):
            a=128+16*ct+r; i=(r&3)+8*(r>>2)
            e(f'v_cvt_pk_bf16_f32 v{32+(r&3)}, v{a}, v{a}'); e(f'ds_write_b16 v23, v{32+(r&3)} offset:{ct*8192+i*8}')
    e.wait(lg=0); e('s_barrier')
    srd(e,8,58,1152); e(f's_lshl_b32 s66, {task}, 3'); e('v_mov_b32 v3, s66'); e('buffer_load_dwordx2 v[10:11], v3, s[8:11], 0 offen')
    for i in range(8):
        e(f's_add_u32 s67, s43, {i*64*1152}'); e(f'buffer_load_dwordx2 v[{32+2*i}:{33+2*i}], v15, s[4:7], s67 offen')
    e(f's_lshl_b32 s67, {wave}, 12'); e('v_lshlrev_b32 v16, 3, v1'); e('v_add_u32 v16, s67, v16')
    for i in range(8): e(f'ds_read_b64 v[{48+2*i}:{49+2*i}], v16 offset:{i*512}')
    srd(e,8,62,2048*2304)
    e('v_lshlrev_b32 v12, 16, v10'); e('v_and_b32 v13, 0xffff0000, v10'); e('v_lshlrev_b32 v20, 16, v11'); e('v_and_b32 v21, 0xffff0000, v11')
    e('v_mul_u32_u24 v15, 2304, v1'); e(f's_mul_i32 s43, {wave}, {512*2304}'); e('s_add_u32 s43, s43, s66'); e('s_add_u32 s43, s43, 1152')
    for i in range(8):
        for h,(d0,d1) in enumerate(((12,13),(20,21))):
            u=32+2*i+h; y=48+2*i+h
            e(f'v_lshlrev_b32 v22, 16, v{u}'); e(f'v_and_b32 v23, 0xffff0000, v{u}'); e(f'v_mul_f32 v22, v22, v{d0}'); e(f'v_mul_f32 v23, v23, v{d1}')
            e('v_cvt_pk_bf16_f32 v22, v22, v23'); e('v_lshlrev_b32 v24, 16, v22'); e('v_and_b32 v25, 0xffff0000, v22')
            e(f'v_lshlrev_b32 v22, 16, v{y}'); e(f'v_and_b32 v23, 0xffff0000, v{y}'); e('v_add_f32 v22, v22, v24'); e('v_add_f32 v23, v23, v25')
            e(f'v_cvt_pk_bf16_f32 v{u}, v22, v23')
        e(f's_add_u32 s67, s43, {i*64*2304}'); e(f'buffer_store_dwordx2 v[{32+2*i}:{33+2*i}], v15, s[8:11], s67 offen {st}')
    e.waitdrain(); e('s_barrier')
import struct
def fbits(x): return struct.unpack('<I',struct.pack('<f',float(x)))[0]
def worker(e):
    e('s_cmp_lg_u32 s3, 0'); e.fwd('s_cbranch_scc1','WK_W')
    e('s_mov_b64 exec, 1'); e('v_mov_b32 v4, 1'); e('v_mov_b32 v3, 76'); e('buffer_atomic_add v4, v3, s[16:19], 0 offen sc0'); e('v_mov_b32 v3, 0'); e('ds_write_b32 v3, v4'); e.wait(lg=0); e('s_mov_b64 exec, -1')
    e.label('WK_W'); e('s_barrier'); e('v_mov_b32 v3, 0'); e('ds_read_b32 v4, v3'); e('v_readfirstlane_b32 s40, v4'); e.wait(lg=0); e('s_barrier')
    e('s_cmp_ge_u32 s40, 144'); e.fwd('s_cbranch_scc1','WK_E')
    gen_S(e)
    e.label('WK_E')
```

```python
from em import *; from lay import *
SCALE=0x3db504f3
LOG2E=0x3fb8aa3b
WOT=0x5000000
def red4(e,x,t,op):
    e(f'v_mov_b32 v{t}, v{x}'); e(f'v_permlane32_swap_b32 v{x}, v{t}'); e(f'{op} v{x}, v{x}, v{t}')
    e(f'v_mov_b32 v{t}, v{x}'); e(f'v_permlane16_swap_b32 v{x}, v{t}'); e(f'{op} v{x}, v{x}, v{t}')
def rnd2(e,a,b,t):
    e(f'v_cvt_pk_bf16_f32 v{t}, v{a}, v{b}'); e(f'v_lshlrev_b32 v{a}, 16, v{t}'); e(f'v_and_b32 v{b}, 0xffff0000, v{t}')
def softmax(e,vals,masks,t,sS,sL):
    n=len(vals)
    for i in range(0,n,2): rnd2(e,vals[i],vals[i+1],t+(i//2)%2)
    for v in vals: e(f'v_mul_f32 v{v}, {sS}, v{v}')
    for i in range(0,n,2): rnd2(e,vals[i],vals[i+1],t+(i//2)%2)
    for v,m in zip(vals,masks):
        if m: e(f'v_cndmask_b32 v{v}, v{t+3}, v{v}, {m}')
    e(f'v_max_f32 v{t}, v{vals[0]}, v{vals[1]}')
    for i in range(2,n,2): e(f'v_max3_f32 v{t}, v{t}, v{vals[i]}, v{vals[i+1]}')
    red4(e,t,t+1,'v_max_f32')
    e(f'v_mul_f32 v{t}, {sL}, v{t}')
    for v in vals: e(f'v_fma_f32 v{v}, v{v}, {sL}, -v{t}')
    for v in vals: e(f'v_exp_f32 v{v}, v{v}')
    e(f'v_add_f32 v{t}, v{vals[0]}, v{vals[1]}')
    for v in vals[2:]: e(f'v_add_f32 v{t}, v{t}, v{v}')
    red4(e,t,t+1,'v_add_f32')
    e(f'v_rcp_f32 v{t}, v{t}')
    for v in vals: e(f'v_mul_f32 v{v}, v{v}, v{t}')
def xatt_setup(e):
    e('s_load_dwordx2 s[8:9], s[0:1], 144'); e.smwait()
    srd(e,12,8,hex(0x8000000))
    e('v_and_b32 v3, 63, v0'); e('v_lshlrev_b32 v1, 4, v3'); e('v_lshlrev_b32 v2, 2, v3')
    e('v_and_b32 v4, 15, v3'); e('v_lshrrev_b32 v5, 4, v3'); e('v_lshlrev_b32 v5, 2, v5')
    for r in range(4):
        e(f'v_add_u32 v6, {r}, v5'); e(f'v_cmp_le_u32 s[{60+2*r}:{61+2*r}], v6, v4')
    e(f's_mov_b32 s68, {hex(SCALE)}'); e(f's_mov_b32 s69, {hex(LOG2E)}')
def gen_X(e,task='s40',wave='s3',st='',ld=''):
    e(f's_lshr_b32 s41, {task}, 3'); e(f's_and_b32 s42, {task}, 7'); e('s_lshl_b32 s42, s42, 2'); e(f's_add_u32 s42, s42, {wave}')
    e('s_lshl_b32 s43, s41, 5'); e('s_add_u32 s43, s43, s42')
    e('s_lshl_b32 s44, s43, 13')
    e(f's_add_u32 s45, s44, {hex(VX)}'); e(f's_add_u32 s46, s44, {hex(QX)}'); e(f's_add_u32 s49, s44, {hex(OX)}')
    e('s_lshl_b32 s47, s43, 12'); e(f's_add_u32 s47, s47, {hex(KM)}')
    e('s_lshl_b32 s48, s43, 11'); e(f's_add_u32 s48, s48, {hex(VM)}')
    Q,K,V,KMr,VMr=32,64,96,128,144
    def ldx4(d,so,off):
        if off<4096: e(f'buffer_load_dwordx4 v[{d}:{d+3}], v1, s[12:15], {so} offen offset:{off} {ld}')
        else: e(f'buffer_load_dwordx4 v[{d}:{d+3}], v7, s[12:15], {so} offen offset:{off-4096} {ld}')
    e('v_add_u32 v7, 4096, v1')
    for i in range(8): ldx4(Q+4*i,'s46',1024*i)
    for i in range(8): ldx4(K+4*i,'s44',1024*i)
    for i in range(4): ldx4(KMr+4*i,'s47',1024*i)
    for i in range(8):
        e(f'buffer_load_dword v{VMr+2*i}, v2, s[12:15], s48 offen offset:{256*i} {ld}')
    for i in range(8): ldx4(V+4*i,'s45',1024*i)
    for i in range(8): e(f'v_mov_b32 v{VMr+2*i+1}, 0')
    e('v_mov_b32 v27, 0xff800000')
    f=lambda b:f'v[{b}:{b+3}]'
    S={(0,0):160,(0,2):164,(1,0):168,(1,1):172,(1,2):176}
    for w in range(4):
        for (qt,kt),d in S.items():
            A=f(K+(w*2+kt)*4) if kt<2 else f(KMr+4*w)
            e(f'v_mfma_f32_16x16x32_bf16 {f(d)}, {A}, {f(Q+(w*2+qt)*4)}, {f(d) if w else 0}')
    mk=[f's[{60+2*r}:{61+2*r}]' for r in range(4)]
    softmax(e,[160,161,162,163,164,165],mk+[None,None],24,'s68','s69')
    e('v_cvt_pk_bf16_f32 v180, v160, v161'); e('v_cvt_pk_bf16_f32 v181, v162, v163'); e('v_mov_b32 v182, 0'); e('v_mov_b32 v183, 0')
    e('v_cvt_pk_bf16_f32 v184, v164, v165'); e('v_mov_b32 v185, 0')
    def pv(P,Pm,qt):
        for i in range(8): e(f'v_mfma_f32_16x16x32_bf16 {f(192+4*i)}, {f(V+4*i)}, {f(P)}, 0')
        for i in range(8): e(f'v_mfma_f32_16x16x16_bf16 {f(192+4*i)}, v[{VMr+2*i}:{VMr+2*i+1}], v[{Pm}:{Pm+1}], {f(192+4*i)}')
    def ost(qt,t):
        for w in range(4):
            a=192+8*w; d=t+4*w
            for i in range(4): e(f'v_cvt_pk_bf16_f32 v{d+i}, v{a+2*i}, v{a+2*i+1}')
            off=(w*2+qt)*1024
            e(f'buffer_store_dwordx4 {f(d)}, v{1 if off<4096 else 7}, s[12:15], s49 offen offset:{off&4095} {st}')
    pv(180,184,0)
    softmax(e,[168,169,170,171,172,173,174,175,176,177],[None]*4+mk+[None,None],24,'s68','s69')
    for i in range(4): e(f'v_cvt_pk_bf16_f32 v{188+i}, v{168+2*i}, v{169+2*i}')
    e('v_cvt_pk_bf16_f32 v186, v176, v177'); e('v_mov_b32 v187, 0')
    ost(0,224)
    pv(188,186,1)
    ost(1,240)
def gen_T(e,unit='s40',wave='s3',st=''):
    e('s_load_dwordx2 s[4:5], s[0:1], 40'); e('s_load_dwordx2 s[8:9], s[0:1], 144'); e.smwait()
    srd(e,12,4,32*128*1152); srd(e,16,8,hex(18*32*4*2*1024),off=hex(WOT))
    e('v_and_b32 v3, 63, v0'); e('v_lshlrev_b32 v1, 4, v3')
    e(f's_lshl_b32 s41, {unit}, 2'); e(f's_add_u32 s41, s41, {wave}')
    e('s_mul_i32 s42, s41, 36864'); e(f's_mul_i32 s43, {wave}, 36864')
    for i in range(36):
        e(f's_add_u32 m0, s43, {i*1024}'); e(f's_add_u32 s44, s42, {i*1024}')
        e.dma('buffer_load_dwordx4 v1, s[12:15], s44 offen lds','#t')
    e('v_and_b32 v4, 15, v3'); e('v_lshrrev_b32 v4, 2, v4'); e('v_lshrrev_b32 v5, 5, v3'); e('v_lshlrev_b32 v5, 2, v5'); e('v_add_u32 v4, v4, v5')
    e('v_mul_u32_u24 v4, 1152, v4'); e('v_lshrrev_b32 v5, 4, v3'); e('v_and_b32 v5, 1, v5'); e('v_lshlrev_b32 v5, 5, v5')
    e('v_and_b32 v6, 3, v3'); e('v_lshlrev_b32 v6, 3, v6'); e('v_add_u32 v4, v4, v5'); e('v_add_u32 v4, v4, v6'); e('v_add_u32 v4, s43, v4')
    e('s_lshl_b32 s45, s41, 11')
    e.wait(vm=0)
    for ct in range(18):
        for m in range(2):
            d=16+4*((ct*2+m)&7)
            e(f'ds_read_b64_tr_b16 v[{d}:{d+1}], v4 offset:{8*m*1152+ct*64}')
            e(f'ds_read_b64_tr_b16 v[{d+2}:{d+3}], v4 offset:{(8*m+16)*1152+ct*64}')
            e(f's_add_u32 s46, s45, {ct*32*4*2048+m*1024}')
            e(f'buffer_store_dwordx4 v[{d}:{d+3}], v1, s[16:19], s46 offen {st}')
def gen_W(e,task='s40',wave='s3',ld=''):
    e('s_load_dwordx2 s[4:5], s[0:1], 128'); e('s_load_dwordx2 s[8:9], s[0:1], 144'); e.smwait()
    srd(e,12,8,hex(0x8000000)); srd(e,16,4,2048*2304)
    e(f's_mul_i32 s41, {task}, 10923'); e('s_lshr_b32 s41, s41, 16'); e('s_mul_i32 s42, s41, 6'); e(f's_sub_u32 s42, {task}, s42')
    e('v_and_b32 v3, 63, v0'); e('v_lshlrev_b32 v1, 4, v3')
    e('v_and_b32 v4, 15, v3'); e('v_lshlrev_b32 v4, 4, v4'); e('v_lshrrev_b32 v5, 4, v3'); e('v_and_b32 v5, 1, v5'); e('v_lshlrev_b32 v5, 10, v5')
    e('v_lshrrev_b32 v6, 5, v3'); e('v_lshlrev_b32 v6, 8, v6'); e('v_add_u32 v4, v4, v5'); e('v_add_u32 v2, v4, v6')
    e('s_lshl_b32 s43, s41, 19'); e(f's_lshl_b32 s44, {wave}, 16'); e('s_add_u32 s43, s43, s44'); e(f's_add_u32 s43, s43, {hex(OX)}')
    e(f's_add_u32 s45, s43, {1<<18}')
    e('s_mul_i32 s46, s42, %d'%(3*262144)); e('s_add_u32 s46, s46, s44'); e(f's_add_u32 s46, s46, {hex(WOT)}')
    e(f's_add_u32 s47, s46, {262144}'); e(f's_add_u32 s48, s46, {2*262144}')
    ACC=32; NB=4; FR=128
    def loads(st,kk):
        b=FR+20*st; w=kk>>1; m=kk&1; L=[]
        for i,so in enumerate(('s43','s45')): L.append(f'buffer_load_dwordx4 v[{b+4*i}:{b+4*i+3}], v2, s[12:15], {so} offen offset:{(w&1)*2048+m*512} {ld}' if w<2 else f'buffer_load_dwordx4 v[{b+4*i}:{b+4*i+3}], v7, s[12:15], {so} offen offset:{(w&1)*2048+m*512} {ld}')
        for i,so in enumerate(('s46','s47','s48')): L.append(f'buffer_load_dwordx4 v[{b+8+4*i}:{b+11+4*i}], v{1 if w<2 else 6}, s[12:15], {so} offen offset:{(w&1)*2048+m*1024} {ld}')
        return L
    e('v_add_u32 v7, 4096, v2'); e('v_add_u32 v6, 4096, v1')
    for i in range(96): e(f'v_mov_b32 v{ACC+i}, 0')
    def adv():
        for r in('s43','s45','s46','s47','s48'): e(f's_add_u32 {r}, {r}, 8192')
    for k in range(3):
        for x in loads(k,k): e(x)
    e('s_mov_b32 s50, 0')
    lab=e.u('W_L'); e.label(lab,drain=False)
    for kk in range(8):
        nk=kk+3
        if nk==8:
            e('s_cmp_eq_u32 s50, 7'); e('s_cselect_b32 s51, 0, 8192')
            for r in('s43','s45','s46','s47','s48'): e(f's_add_u32 {r}, {r}, s51')
        for x in loads(nk&3,nk&7): e(x)
        b=FR+20*(kk&3)
        for tt in range(2):
            for c in range(3):
                D=f'v[{ACC+16*(tt*3+c)}:{ACC+16*(tt*3+c)+15}]'
                e(f'v_mfma_f32_32x32x16_bf16 {D}, v[{b+8+4*c}:{b+11+4*c}], v[{b+4*tt}:{b+4*tt+3}], {D}')
    e('s_add_u32 s50, s50, 1'); e('s_cmp_lt_u32 s50, 8'); e.back('s_cbranch_scc1',lab)
    e.waitdrain()
    e(f's_mul_i32 s51, {wave}, 24576'); e('v_add_u32 v4, s51, v1')
    for i in range(24): e(f'ds_write_b128 v4, v[{ACC+4*i}:{ACC+4*i+3}] offset:{i*1024}')
    e.wait(lg=0); e('s_barrier')
    e(f's_mul_i32 s51, {wave}, 6144'); e('v_add_u32 v4, s51, v1')
    e('v_add_u32 v5, %d, v4'%49152)
    e('v_and_b32 v8, 31, v3'); e('v_mul_u32_u24 v8, 2304, v8'); e('v_lshrrev_b32 v9, 5, v3'); e('v_lshlrev_b32 v9, 3, v9'); e('v_add_u32 v8, v8, v9')
    e('s_mul_i32 s52, s41, %d'%(64*2304)); e('s_mul_i32 s53, s42, 192'); e('s_add_u32 s52, s52, s53')
    for j in range(6):
        d=160
        e(f'ds_read_b128 v[{d}:{d+3}], v4 offset:{j*1024}'); e(f'ds_read_b128 v[{d+4}:{d+7}], v4 offset:{24576+j*1024}')
        e(f'ds_read_b128 v[{d+8}:{d+11}], v5 offset:{j*1024}'); e(f'ds_read_b128 v[{d+12}:{d+15}], v5 offset:{24576+j*1024}')
        for r in range(4):
            e(f'v_add_f32 v{d+r}, v{d+r}, v{d+4+r}'); e(f'v_add_f32 v{d+8+r}, v{d+8+r}, v{d+12+r}'); e(f'v_add_f32 v{d+r}, v{d+r}, v{d+8+r}')
        e(f'v_cvt_pk_bf16_f32 v{176+2*(j&1)}, v{d}, v{d+1}'); e(f'v_cvt_pk_bf16_f32 v{177+2*(j&1)}, v{d+2}, v{d+3}')
        e(f's_mul_i32 s54, {wave}, 6'); e(f's_add_u32 s54, s54, {j}'); e('s_lshr_b32 s55, s54, 2'); e('s_and_b32 s56, s54, 3')
        e('s_cmp_ge_u32 s55, 3'); e('s_cselect_b32 s57, %d, 0'%(32*2304)); e('s_cselect_b32 s58, 3, 0'); e('s_sub_u32 s55, s55, s58')
        e('s_lshl_b32 s55, s55, 6'); e('s_lshl_b32 s56, s56, 4'); e('s_add_u32 s57, s57, s55'); e('s_add_u32 s57, s57, s56'); e('s_add_u32 s57, s57, s52')
        e(f'buffer_store_dwordx2 v[{176+2*(j&1)}:{177+2*(j&1)}], v8, s[16:19], s57 offen')
    e.waitdrain(); e('s_barrier')
```

```python
from em import *; from lay import *
import kp,kx
from build import wave_id
def gPT(e):
    e('s_cmp_ge_u32 s2, 224'); e.fwd('s_cbranch_scc1','PT_END')
    wave_id(e); e('s_mov_b32 s40, s2')
    e('s_cmp_ge_u32 s2, 192'); e.fwd('s_cbranch_scc1','PT_T')
    kp.gen_P(e); e.fwd('s_branch','PT_END')
    e.label('PT_T'); e('s_sub_u32 s40, s2, 192'); kx.gen_T(e)
    e.label('PT_END')
def gX(e):
    e('s_cmp_ge_u32 s2, 256'); e.fwd('s_cbranch_scc1','X_END')
    wave_id(e); kx.xatt_setup(e); e('s_mov_b32 s40, s2')
    e.label('X_L'); kx.gen_X(e)
    e('s_add_u32 s40, s40, 256'); e('s_cmp_lt_u32 s40, 512'); e.back('s_cbranch_scc1','X_L')
    e.label('X_END')
def gW(e):
    e('s_cmp_ge_u32 s2, 192'); e.fwd('s_cbranch_scc1','W_END')
    wave_id(e); e('s_mov_b32 s40, s2'); kx.gen_W(e)
    e.label('W_END')
K={'PT':('pt_kernel',gPT,224),'X':('x_kernel',gX,256),'W':('w_kernel',gW,192)}
import kc
def gC(e):
    e('s_cmp_ge_u32 s2, 256'); e.fwd('s_cbranch_scc1','C_EXIT')
    wave_id(e); kc.team(e)
    e('s_cmp_ge_u32 s20, 32'); e.fwd('s_cbranch_scc1','C_WORK')
    e('s_cmp_lg_u32 s35, 0'); e.fwd('s_cbranch_scc1','C_SLOW')
    kc.gen_chain(e,'','_f'); e.fwd('s_branch','C_EXIT')
    e.label('C_SLOW'); kc.gen_chain(e,'sc1','_s'); e.fwd('s_branch','C_EXIT')
    e.label('C_WORK')
    try:
        import ks; ks.worker(e)
    except ImportError: pass
    e.label('C_EXIT')
K['C']=('c_kernel',gC,256)
```

```python
import sys
from em import *; from lay import *
import kp
NAME='concat_heads__memory_aug_recurrent_mem_tr__ssm_conv_s4__prompt'
HDR=[l for l in open('cdna_kernels/%s.s.ref'%NAME).read().split('\n') if l.startswith(';') and '@launch' not in l]
def kern(name,gen):
    e=E()
    e.raw(f'.globl {name}\n.p2align 8\n.type {name},@function\n{name}:')
    gen(e); e.waitdrain(); e.raw('  s_endpgm')
    return e.text()
def wave_id(e,s='s3'):
    e('v_lshrrev_b32 v1, 6, v0'); e(f'v_readfirstlane_b32 {s}, v1')
def gP(e):
    e('s_cmp_ge_u32 s2, 192'); e.fwd('s_cbranch_scc1','P_END')
    wave_id(e); e('s_mov_b32 s40, s2'); kp.gen_P(e)
    e.label('P_END')
def assemble(launches,kerns,path):
    t='\n'.join(HDR)+'\n'
    for n,g,l in launches: t+=f'; @launch kernel={n} grid=({g},1,1) block=(256,1,1) lds={l}\n'
    t+='.amdgcn_target "amdgcn-amd-amdhsa--gfx950"\n.text\n'
    for n,txt in kerns: t+=txt
    for n,txt in kerns: t+=kfoot(n)
    open(path,'w').write(t)
if __name__=='__main__':
    which=sys.argv[1]; out=sys.argv[2]
    K={'P':('p_kernel',gP,192)}
    import importlib
    try:
        import more; K.update(more.K)
    except ImportError: pass
    L=[];KS=[]
    for c in which.split(','):
        n,g,gr=K[c]; L.append((n,gr,163840)); KS.append((n,kern(n,g)))
    assemble(L,KS,out)
```

```python
from em import *; from lay import *
from kx import softmax,SCALE,LOG2E
MREG=147456; QS=MREG+9216; OXB=QS+5120
PSZ=32*9216
def W8(F): return vr(8*F,8,'a') if F<32 else vr(80+8*(F-32),8)
def W2(F,i): return vr(8*F+2*i,2,'a') if F<32 else vr(80+8*(F-32)+2*i,2)
f4=lambda b:f'v[{b}:{b+3}]'
def junk(e,x):
    e.L.append('  '+x); e.t+=1; e.vm.append(set())
def team(e):
    e('s_load_dwordx2 s[4:5], s[0:1], 136'); e.smwait(); srd(e,16,4,256)
    e('s_getreg_b32 s10, hwreg(HW_REG_XCC_ID, 0, 4)')
    e('s_cmp_lg_u32 s3, 0'); e.fwd('s_cbranch_scc1','T_WAIT')
    e('s_mov_b64 s[26:27], exec'); e('s_mov_b64 exec, 1')
    e('s_lshl_b32 s25, s10, 2'); e('v_mov_b32 v3, s25'); e('v_mov_b32 v4, 1'); e('v_mov_b32 v5, 1'); e('v_mov_b32 v6, 68')
    e('buffer_atomic_add v4, v3, s[16:19], 0 offen sc0'); e('buffer_atomic_add v5, v6, s[16:19], 0 offen sc0')
    e('v_readfirstlane_b32 s28, v4'); e('v_readfirstlane_b32 s29, v5')
    e('v_mov_b32 v3, 64')
    e('s_cmp_eq_u32 s28, 31'); e.fwd('s_cbranch_scc0','T_NL')
    e('s_add_u32 s30, s10, 1'); e('v_mov_b32 v4, s30'); e('v_mov_b32 v5, 0')
    e('buffer_atomic_cmpswap v[4:5], v3, s[16:19], 0 offen sc0')
    e.label('T_NL'); e('s_mov_b32 s30, 0')
    e.label('T_POLL')
    e('buffer_load_dword v4, v3, s[16:19], 0 offen sc1'); e('v_readfirstlane_b32 s31, v4')
    e('s_cmp_lg_u32 s31, 0'); e.fwd('s_cbranch_scc1','T_DONE')
    e('s_add_u32 s30, s30, 1'); e('s_cmp_lt_u32 s30, 3000'); e.back('s_cbranch_scc1','T_POLL')
    e('v_mov_b32 v4, 100'); e('v_mov_b32 v5, 0'); e('buffer_atomic_cmpswap v[4:5], v3, s[16:19], 0 offen sc0'); e.wait(vm=0)
    e('s_mov_b32 s30, 2990'); e.back('s_branch','T_POLL')
    e.label('T_DONE')
    e('s_mov_b32 s20, 0xffff'); e('s_mov_b32 s35, 0')
    e('s_add_u32 s30, s10, 1'); e('s_cmp_eq_u32 s31, s30'); e('s_cselect_b32 s20, s28, s20')
    e('s_cmp_eq_u32 s31, 100'); e('s_cselect_b32 s20, s29, s20'); e('s_cselect_b32 s35, 1, 0')
    e('v_mov_b32 v4, s20'); e('v_mov_b32 v5, s35'); e('v_mov_b32 v3, 0'); e('ds_write_b64 v3, v[4:5])'.replace(')','')); e.wait(lg=0)
    e('s_mov_b64 exec, s[26:27]')
    e.label('T_WAIT'); e('s_barrier')
    e('v_mov_b32 v3, 0'); e('ds_read_b64 v[4:5], v3'); e('v_readfirstlane_b32 s20, v4'); e('v_readfirstlane_b32 s35, v5'); e.wait(lg=0); e('s_barrier')
def chain_setup(e):
    e('s_load_dwordx2 s[8:9], s[0:1], 144'); e('s_load_dwordx2 s[36:37], s[0:1], 16'); e('s_load_dwordx2 s[38:39], s[0:1], 24')
    e('s_load_dwordx2 s[40:41], s[0:1], 32'); e('s_load_dwordx2 s[42:43], s[0:1], 40'); e('s_load_dwordx2 s[44:45], s[0:1], 8'); e.smwait()
    srd(e,12,8,hex(0x8000000))
    e('v_and_b32 v20, 63, v0'); e('v_lshlrev_b32 v1, 4, v20')
    e('v_lshrrev_b32 v21, 4, v20')
    e('v_and_b32 v22, 15, v20')
    e('v_and_b32 v23, 3, v20'); e('v_lshrrev_b32 v24, 2, v22')
    e('v_mov_b32 v28, -1'); e('v_mov_b32 v29, -1'); e('v_mov_b32 v30, -1'); e('v_mov_b32 v31, -1')
    e('s_mul_i32 s46, s20, 9216'); e('s_mul_i32 s47, s3, 2304'); e('s_add_u32 s46, s46, s47'); e(f's_add_u32 s46, s46, {hex(PB)}')
    return
def st_init(e,ST):
    for b in range(1):
        for i in range(3):
            if i==2: e('s_mov_b64 exec, 0xffff')
            e(f's_add_u32 s47, s46, {b*PSZ+i*1024}'); e(f'buffer_store_dwordx4 v[28:31], v1, s[12:15], s47 offen {ST}')
        e('s_mov_b64 exec, -1')
def gen_chain(e,ST,sfx,fused=False,KST='sc1'):
    L=lambda n:n+sfx
    chain_setup(e); st_init(e,ST)
    e('s_lshr_b32 s48, s20, 2'); e('s_and_b32 s49, s20, 3')
    e('s_mul_i32 s50, s48, 72'); e('v_lshlrev_b32 v25, 1, v20'); e('v_add_u32 v25, s50, v25')
    e('v_lshrrev_b32 v26, 3, v25'); e('v_lshlrev_b32 v26, 7, v26'); e('v_and_b32 v27, 7, v25'); e('v_lshlrev_b32 v27, 1, v27'); e('v_add_u32 v26, v26, v27')
    e('s_and_b32 s50, s49, 1'); e('s_lshl_b32 s50, s50, 2'); e('s_lshr_b32 s51, s49, 1'); e('s_lshl_b32 s51, s51, 1'); e('s_add_u32 s50, s50, s51')
    e('s_and_b32 s51, s3, 1'); e('s_add_u32 s50, s50, s51')
    e('s_lshl_b32 s51, s50, 4'); e('v_add_u32 v16, s51, v26')
    srd(e,4,44,9216)
    e('s_mul_i32 s51, s50, 1152'); e('v_lshlrev_b32 v27, 1, v25'); e('v_add_u32 v27, s51, v27')
    e('s_mov_b32 s52, -1'); e('s_mov_b32 s53, 15')
    e('s_cmp_lt_u32 s3, 2'); e('s_cselect_b64 s[52:53], s[52:53], 0')
    e('s_mov_b64 exec, s[52:53]')
    lab=L('C_NOINIT'); e.fwd('s_cbranch_execz',lab)
    e('buffer_load_dword v32, v27, s[4:7], 0 offen'); e('v_mov_b32 v33, -1')
    e(f's_mov_b32 s47, {hex(MB)}'); e(f'buffer_store_dword v32, v16, s[12:15], s47 offen {ST}')
    e(f's_mov_b32 s47, {hex(MB+9216)}'); e(f'buffer_store_dword v33, v16, s[12:15], s47 offen {ST}')
    e(f's_mov_b32 s47, {hex(MB+2*9216)}'); e(f'buffer_store_dword v33, v16, s[12:15], s47 offen {ST}')
    e.label(lab); e('s_mov_b64 exec, -1')
    e.wait(vm=0); e('s_barrier')
    e('s_cmp_lg_u32 s3, 0'); lab=L('C_NOSIG'); e.fwd('s_cbranch_scc1',lab)
    e('s_mov_b64 exec, 1'); e('v_mov_b32 v32, 1'); e('v_mov_b32 v33, 72'); e('buffer_atomic_add v32, v33, s[16:19], 0 offen'); e('s_mov_b64 exec, -1')
    e.label(lab)
    e('v_and_b32 v34, 1, v21'); e('s_and_b32 s50, s3, 1'); e('s_lshl_b32 s50, s50, 1'); e('s_lshr_b32 s51, s3, 1'); e('s_lshl_b32 s51, s51, 2'); e('s_add_u32 s50, s50, s51')
    e('v_add_u32 v34, s50, v34'); e('v_lshlrev_b32 v34, 1, v34'); e('v_xor_b32 v34, v34, v22'); e('v_lshlrev_b32 v34, 4, v34')
    e('v_lshlrev_b32 v35, 13, v21'); e('v_add_u32 v32, v34, v35')
    e('v_lshrrev_b32 v34, 5, v20'); e('s_and_b32 s50, s3, 1'); e('s_lshl_b32 s50, s50, 1'); e('v_add_u32 v34, s50, v34'); e('v_lshlrev_b32 v34, 1, v34')
    e('v_and_b32 v35, 7, v20'); e('v_xor_b32 v34, v34, v35'); e('v_lshlrev_b32 v34, 4, v34'); e('v_lshrrev_b32 v35, 3, v20'); e('v_mul_u32_u24 v35, 1152, v35'); e('v_add_u32 v33, v34, v35')
    srd(e,56,36,576*8192); srd(e,60,38,576*8192); srd(e,64,40,576*8192); srd(e,68,42,32*128*1152)
    e('s_lshl_b32 s50, s20, 8'); e('s_lshl_b32 s51, s3, 15'); e('s_add_u32 s50, s50, s51')
    e('s_lshl_b32 s51, s3, 10')
    e('s_mul_i32 s72, s20, %d'%(128*1152)); e('s_mul_i32 s73, s3, %d'%(16*1152)); e('s_add_u32 s72, s72, s73')
    e('s_lshl_b32 s73, s3, 11')
    def dmaW(sr,half,buf,tag):
        for j in range(18):
            e(f's_add_u32 s74, s50, {(288*half+16*j)*8192}'); e(f's_add_u32 m0, s51, {buf+j*4096}')
            e.dma(f'buffer_load_dwordx4 v32, s[{sr}:{sr+3}], s74 offen lds',tag)
    def dmaO(kb,buf,tag):
        for cb in range(9):
            for a in range(2):
                e(f's_add_u32 s74, s72, {(64*kb+8*a)*1152+cb*128}'); e(f's_add_u32 m0, s73, {buf+cb*8192+a*1024}')
                e.dma('buffer_load_dwordx4 v33, s[68:71], s74 offen lds',tag)
    e('v_lshrrev_b32 v34, 1, v21'); e('v_lshlrev_b32 v34, 4, v34'); e('v_and_b32 v35, 1, v21'); e('v_lshlrev_b32 v36, 2, v35'); e('v_add_u32 v34, v34, v36')
    e('v_lshrrev_b32 v36, 1, v24'); e('v_lshlrev_b32 v37, 3, v36'); e('v_add_u32 v34, v34, v37'); e('v_and_b32 v37, 1, v24'); e('v_add_u32 v34, v34, v37'); e('v_lshlrev_b32 v34, 8, v34')
    e('v_lshlrev_b32 v35, 1, v35'); e('v_add_u32 v35, v35, v37'); e('v_lshlrev_b32 v36, 2, v36'); e('v_add_u32 v35, v35, v36'); e('v_lshlrev_b32 v35, 1, v35')
    e('v_and_b32 v36, 1, v23'); e('v_lshlrev_b32 v36, 3, v36'); e('v_add_u32 v34, v34, v36'); e('v_lshrrev_b32 v36, 1, v23')
    for ct in range(2):
        e('s_lshl_b32 s74, s3, 2'); e(f's_add_u32 s74, s74, {2*ct}'); e('v_add_u32 v37, s74, v36'); e('v_xor_b32 v37, v37, v35'); e('v_lshlrev_b32 v37, 4, v37'); e(f'v_add_u32 v{10+ct}, v34, v37')
    e('v_and_b32 v34, 1, v21'); e('v_lshlrev_b32 v35, 4, v34'); e('v_lshrrev_b32 v37, 1, v21'); e('v_lshlrev_b32 v37, 3, v37'); e('v_add_u32 v35, v35, v37')
    e('v_lshrrev_b32 v37, 1, v24'); e('v_lshlrev_b32 v39, 2, v37'); e('v_add_u32 v35, v35, v39'); e('v_and_b32 v39, 1, v24'); e('v_add_u32 v35, v35, v39'); e('v_lshlrev_b32 v38, 7, v35')
    e('v_lshlrev_b32 v34, 1, v34'); e('v_add_u32 v39, v34, v37')
    e('v_and_b32 v34, 1, v23'); e('v_lshlrev_b32 v34, 3, v34'); e('v_add_u32 v38, v38, v34'); e('v_lshlrev_b32 v34, 4, v36'); e('v_add_u32 v38, v38, v34')
    def rdW(F0,half,buf):
        for kb in range(9):
            for j2 in range(2):
                row=64*kb+32*j2
                if (row>=288)!=(half==1): continue
                for ct in range(2):
                    for q in range(2):
                        off=buf+(row-288*half+2*q)*256
                        rd_tr(W2(F0+ct*9+kb,2*j2+q),10+ct,off)
    def rd_tr(d,a,off):
        if off<65536: e(f'ds_read_b64_tr_b16 {d}, v{a} offset:{off}')
        else:
            e(f'v_add_u32 v40, {off&~0xffff}, v{a}'); e(f'ds_read_b64_tr_b16 {d}, v40 offset:{off&0xffff}')
    def rdO(kb,buf):
        for tt in range(9):
            e('s_mul_i32 s74, s3, 9'); e(f's_add_u32 s74, s74, {tt}'); e('s_and_b32 s75, s74, 3'); e('s_lshr_b32 s74, s74, 2'); e('s_lshl_b32 s74, s74, 13'); e(f's_add_u32 s74, s74, {buf}')
            e('v_xor_b32 v41, s75, v39'); e('v_lshlrev_b32 v41, 5, v41'); e('v_add_u32 v41, v41, v38'); e('v_add_u32 v41, s74, v41')
            for j2 in range(2):
                for q in range(2): e(f'ds_read_b64_tr_b16 {W2(36+tt*2+kb,2*j2+q)}, v41 offset:{(32*j2+2*q)*128}')
    A,B=0,73728
    seq=[('q',0),('q',1),('k',0),('k',1),('o',0),('o',1),('v',0),('v',1)]
    def issue(i):
        m,hf=seq[i]; buf=A if i%2==0 else B
        if m=='o': dmaO(hf,buf,f'#c{i}')
        else: dmaW({'q':56,'k':60,'v':64}[m],hf,buf,f'#c{i}')
    issue(0); issue(1)
    for i in range(6):
        m,hf=seq[i]; buf=A if i%2==0 else B
        e.need(f'#c{i}'); e('s_barrier')
        if m=='o': rdO(hf,buf)
        else: rdW({'q':0,'k':18}[m],hf,buf)
        e.wait(lg=0); e('s_barrier'); issue(i+2)
    e.wait(vm=0); e('s_barrier')
    e('s_lshl_b32 s74, s3, 12'); e('v_add_u32 v42, s74, v1')
    for r3 in range(5):
        nb=2 if r3<4 else 1
        for b in range(nb):
            kb=2*r3+b
            for ct in range(2):
                for j2 in range(2):
                    for q in range(2):
                        d=44+16*b+8*ct+4*j2+2*q
                        rd_tr(f'v[{d}:{d+1}]',10+ct,kb*16384+j2*8192+q*512)
        e.wait(lg=0); e('s_barrier')
        for b in range(nb):
            kb=2*r3+b
            e(f'v_add_u32 v43, {kb*16384}, v42')
            for ct in range(2):
                for hf in range(2): e(f'ds_write_b128 v43, {f4(44+16*b+8*ct+4*hf)} offset:{ct*2048+hf*1024}')
        e.wait(lg=0)
    e('v_mov_b32 v10, v42'); e('v_mov_b32 v11, v42')
    e('s_barrier')
    e('v_mov_b32 v2, 0x44444444'); e('v_mov_b32 v34, 0xeeeeeeee'); e('v_cmp_gt_u32 vcc, 8, v22'); e('v_cndmask_b32 v2, v34, v2, vcc')
    e(f's_mul_i32 s74, s3, 1280'); e(f's_add_u32 s74, s74, {QS}')
    e('v_and_b32 v34, 1, v21'); e('v_lshlrev_b32 v34, 2, v34'); e('v_lshrrev_b32 v35, 1, v21'); e('v_lshlrev_b32 v35, 1, v35'); e('v_add_u32 v34, v34, v35')
    e('v_mul_u32_u24 v34, 80, v34'); e('v_lshlrev_b32 v35, 2, v22'); e('v_add_u32 v34, v34, v35'); e('v_add_u32 v3, s74, v34')
    e('v_and_b32 v34, 7, v20'); e('v_mul_u32_u24 v34, 80, v34'); e('v_lshlrev_b32 v35, 4, v21'); e('v_add_u32 v34, v34, v35'); e('v_add_u32 v4, s74, v34')
    e('v_and_b32 v34, 1, v24'); e('v_lshlrev_b32 v34, 2, v34'); e('v_lshrrev_b32 v36, 1, v24'); e('v_lshlrev_b32 v36, 1, v36'); e('v_add_u32 v34, v34, v36'); e('v_and_b32 v36, 1, v22'); e('v_add_u32 v34, v34, v36')
    e('v_mul_u32_u24 v34, 80, v34'); e('v_add_u32 v34, v34, v35'); e('v_add_u32 v5, s74, v34'); e('v_add_u32 v5, 640, v5')
    e('v_add_u32 v6, s74, v1'); e(f'v_add_u32 v7, {MREG}, v1')
    e('v_lshlrev_b32 v35, 2, v20'); e(f'v_add_u32 v18, {QS+1024}, v35'); e('s_mul_i32 s75, s3, 1280'); e('v_add_u32 v19, s75, v18')
    e('v_lshlrev_b32 v34, 3, v21'); e('v_and_b32 v35, 7, v20'); e('v_add_u32 v34, v34, v35'); e('v_lshlrev_b32 v35, 4, v34')
    e('s_lshl_b32 s75, s3, 9'); e(f's_add_u32 s75, s75, {OXB}'); e('v_add_u32 v8, s75, v35')
    e('v_mul_u32_u24 v34, 2304, v21'); e('v_lshlrev_b32 v35, 2, v22'); e('v_add_u32 v34, v34, v35'); e('s_mul_i32 s75, s3, 576'); e('v_add_u32 v12, s75, v34'); e('v_mul_u32_u24 v35, 12, v22'); e('v_add_u32 v9, v12, v35')
    e('v_and_b32 v34, 31, v20'); e('v_lshrrev_b32 v35, 2, v34'); e('v_lshlrev_b32 v35, 1, v35'); e('v_and_b32 v36, 1, v34'); e('v_add_u32 v17, v35, v36')
    e('v_mov_b32 v36, 99'); e('v_cmp_gt_u32 vcc, 8, v34'); e('v_cndmask_b32 v17, v36, v17, vcc')
    e('v_and_b32 v36, 2, v34'); e('v_mov_b32 v14, 0x3f80'); e('v_mov_b32 v35, 0x3f800000'); e('v_cmp_eq_u32 vcc, 2, v36'); e('v_cndmask_b32 v14, v14, v35, vcc')
    e('s_mov_b32 s21, 0'); e(f's_mov_b32 s22, {hex(MB)}'); e(f's_mov_b32 s23, {hex(MB+9216)}'); e(f's_mov_b32 s24, {hex(MB+18432)}')
    e('s_mul_i32 s80, s20, 9216'); e(f's_add_u32 s80, s80, {hex(PB)}')
    e('s_mul_i32 s81, s49, 2304'); e('s_mul_i32 s74, s48, 288'); e('s_add_u32 s81, s81, s74'); e('s_mul_i32 s74, s3, %d'%(8*9216)); e('s_add_u32 s81, s81, s74'); e(f's_add_u32 s81, s81, {hex(PB)}')
    e('s_mul_i32 s70, s3, 2304'); e('s_add_u32 s70, s70, s80')
    e('s_mov_b32 s25, s80'); e('s_mov_b32 s26, s81'); e('s_mov_b32 s27, 0'); e('s_mov_b32 s70, 0')
    e('s_lshl_b32 s28, s20, 13'); e('s_lshl_b32 s74, s3, 11'); e('s_add_u32 s28, s28, s74')
    e('s_lshl_b32 s29, s20, 12'); e('s_lshl_b32 s74, s3, 10'); e('s_add_u32 s29, s29, s74'); e(f's_add_u32 s29, s29, {hex(KM)}')
    e('s_lshl_b32 s30, s20, 11'); e('s_lshl_b32 s74, s3, 9'); e('s_add_u32 s30, s30, s74'); e(f's_add_u32 s30, s30, {hex(VM)}')
    e('s_mov_b32 s31, 0x20000')
    e(f's_mov_b32 s68, {hex(SCALE)}'); e(f's_mov_b32 s69, {hex(LOG2E)}')
    e('s_mov_b32 s76, 0x00ff00ff'); e('s_mov_b32 s77, s76')
    e('s_mov_b32 s78, 0x3ffff'); e('s_mov_b32 s79, 0x3ffff')
    e('s_lshl_b32 s64, s3, 11')
    e('s_lshl_b32 s74, s3, 4'); e('s_mov_b64 s[66:67], 0xffff'); e('s_lshl_b64 s[66:67], s[66:67], s74')
    e('s_mul_i32 s65, s3, 1280'); e(f's_add_u32 s65, s65, {QS+640}')
    e('s_and_b32 s63, s3, 1'); e('s_lshl_b32 s63, s63, 3')
    e('s_mov_b32 s44, -1'); e('s_mov_b32 s45, 15'); e('s_mov_b32 s71, 0x0c0c0703')
    e('v_mov_b32 v33, 72'); e('s_mov_b32 s74, 0')
    e.label(L('C_RDY'))
    e('buffer_load_dword v32, v33, s[16:19], 0 offen sc1'); e('v_readfirstlane_b32 s75, v32'); e('s_add_u32 s74, s74, 1')
    e('s_cmp_ge_u32 s75, 32'); e.fwd('s_cbranch_scc1',L('C_GO')); e('s_cmp_lt_u32 s74, 20000'); e.back('s_cbranch_scc1',L('C_RDY'))
    e.label(L('C_GO')); e.wait(vm=0); e('s_barrier')
    step_loop(e,ST,sfx,fused,KST)
def chk_retry(e,regs4list,offs,name):
    def chk():
        first=True
        for b in regs4list:
            if first: e(f'v_max3_u32 v79, v{b}, v{b+1}, v{b+2}'); e(f'v_max_u32 v79, v79, v{b+3}'); first=False
            else: e(f'v_max3_u32 v79, v79, v{b}, v{b+1}'); e(f'v_max3_u32 v79, v79, v{b+2}, v{b+3}')
        e('v_cmp_eq_u32 vcc, -1, v79')
    chk()
    ok=e.u(name+'ok'); rt=e.u(name+'rt')
    sv=([set(q) for q in e.vm],[set(q) for q in e.lg]); hv=(list(e.h),e.t+1)
    e.L.append(f'  s_cbranch_vccz {ok}')
    e.L.append(rt+':')
    e('s_sub_u32 s31, s31, 1'); e.L.append(f'  s_cbranch_scc1 {ok}_x')
    for b,o in zip(regs4list,offs): e(mload(b,o))
    e.wait(vm=0); chk(); e.L.append(f'  s_cbranch_vccnz {rt}')
    e.L.append(f'  s_branch {ok}'); e.L.append(f'{ok}_x:'); e.L.append('  s_mov_b32 s31, 0'); e.L.append(ok+':')
    e.vm,e.lg=sv; e.h,e.t=hv
def mload(b,kb):
    return f'buffer_load_dwordx4 {f4(b)}, v1, s[12:15], s22 offen offset:{kb*1024} sc1' if kb<4 else f'buffer_load_dwordx4 {f4(b)}, v78, s[12:15], s22 offen offset:{(kb&3)*1024} sc1' if kb<8 else f'buffer_load_dwordx4 {f4(b)}, v77, s[12:15], s22 offen sc1'
def step_loop(e,ST,sfx,fused,KST):
    L=lambda n:n+sfx
    import os
    PROF=int(os.environ.get('PROF','-1'))
    SP=[82+2*i for i in range(10)]+[56,58]
    PS=os.environ.get('PSET','0,1,2,3,4,5,6,7,8,9,10,11').split(',')
    def T(i):
        i=str(i)
        if PROF>=0 and i in PS: k=PS.index(i); e.L.append(f'  s_memtime s[{SP[k]}:{SP[k]+1}]')
    AQ=[36,40]; AK=[44,48]; AV=[52,56]; SG=[60,68]
    sm=lambda D,A,Bm:e(f'v_smfmac_f32_16x16x64_bf16 {f4(D)}, {f4(A)}, {Bm}, v2')
    def trV(kb,ct,slot):
        for hf in range(2): e(f'ds_read_b128 {f4(slot+4*hf)}, v{10+ct} offset:{(kb&3)*16384+ct*2048+hf*1024}')
    def hadd(D):
        e(f'v_permlane32_swap_b32 v{D}, v{D+2}'); e(f'v_permlane32_swap_b32 v{D+1}, v{D+3}')
    def rdM(kb,d): e(f'ds_read_b128 {f4(d)}, v7 offset:{kb*1024}')
    KX0,KX1=32,76; KXM=''
    def kxl(so): e(f'buffer_load_dwordx4 {f4(KX0)}, v1, s[12:15], {so} offen {KXM}'); e(f'buffer_load_dwordx4 {f4(KX1)}, v1, s[12:15], {so} offen offset:1024 {KXM}')
    def vmst(back):
        e('v_lshrrev_b32 v15, 2, v1'); e(f's_sub_u32 s74, s30, {back}')
        e(f'buffer_store_dword v9, v15, s[12:15], s74 offen {KST}'); e(f'buffer_store_dword v0, v15, s[12:15], s74 offen offset:256 {KST}')
    if hasattr(e,'chain_wait0'): e.chain_wait0(e)
    kxl('s28')
    e.label(L('C_STEP'))
    T(0)
    e('s_add_u32 s72, s22, s64'); e('s_add_u32 s73, s22, 8192')
    e('v_mov_b64 v[28:29], 0'); e('v_mov_b64 v[30:31], 0')
    def mld():
        e(f'buffer_load_dwordx4 {f4(20)}, v1, s[12:15], s72 offen sc1'); e(f'buffer_load_dwordx4 {f4(24)}, v1, s[12:15], s72 offen offset:1024 sc1')
        e('s_mov_b64 exec, s[66:67]'); e(f'buffer_load_dwordx4 {f4(28)}, v1, s[12:15], s73 offen sc1'); e('s_mov_b64 exec, -1')
    def mchk():
        e('v_max3_u32 v15, v20, v21, v22'); e('v_max3_u32 v15, v15, v23, v24'); e('v_max3_u32 v15, v15, v25, v26'); e('v_max3_u32 v15, v15, v27, v28'); e('v_max3_u32 v15, v15, v29, v30'); e('v_max_u32 v15, v15, v31')
        e('v_cmp_eq_u32 vcc, -1, v15')
    trV(0,0,SG[0]); trV(1,0,SG[1])
    for r in range(36,60,2): e(f'v_mov_b64 v[{r}:{r+1}], 0')
    mld()
    e('v_add_u32 v13, s64, v7')
    mchk()
    ok=e.u('mok'); rt=e.u('mrt')
    sv=([set(q) for q in e.vm],[set(q) for q in e.lg]);
    e.hzflush(); e.L.append(f'  s_cbranch_vccz {ok}'); e.L.append(rt+':')
    e('s_sub_u32 s31, s31, 1'); e.L.append(f'  s_cbranch_scc1 {ok}_x')
    mld(); e.wait(vm=0); mchk(); e.hzflush(); e.L.append(f'  s_cbranch_vccnz {rt}')
    e.L.append(f'  s_branch {ok}'); e.L.append(f'{ok}_x:'); e.L.append('  s_mov_b32 s31, 0'); e.L.append(ok+':')
    e.vm=[]; e.lg=sv[1]; e.h=[]
    T(1)
    e(f'ds_write_b128 v13, {f4(20)}'); e(f'ds_write_b128 v13, {f4(24)} offset:1024')
    e('s_mov_b64 exec, s[66:67]'); e(f'ds_write_b128 v7, {f4(28)} offset:8192'); e('s_mov_b64 exec, -1')
    sk=e.u('sk'); e('s_cmp_eq_u32 s21, 0'); e.L.append(f'  s_cbranch_scc1 {sk}')
    vmst(1<<16)
    e.hzflush(); e.L.append(sk+':'); e.h=[]
    e('v_lshlrev_b32 v15, 2, v1'); e(f's_add_u32 s75, s28, {hex(VX+(1<<18))}')
    e('s_mov_b32 exec_hi, 0'); junk(e,'buffer_load_dword v0, v15, s[12:15], s75 offen')
    e(f's_add_u32 s74, s28, {2<<18}'); e(f's_min_u32 s74, s74, {hex(0x1000000-2048)}'); junk(e,'buffer_load_dword v0, v15, s[12:15], s74 offen'); e('s_mov_b64 exec, -1')
    e.wait(lg=0); e('s_barrier'); T('b')
    RING=[20,24,28]
    for kb in range(3): rdM(kb,RING[kb])
    for kb in range(9):
        a=RING[kb%3]
        sm(AQ[0],a,W8(kb)); sm(AK[0],a,W8(18+kb)); sm(AQ[1],a,W8(9+kb)); sm(AK[1],a,W8(27+kb))
        sl=SG[kb&1]; sm(AV[0],a,f'v[{sl}:{sl+7}]')
        if kb+3<9: rdM(kb+3,a)
        if kb+2<9:
            if (kb+2)&3==0: e('v_add_u32 v10, 0x10000, v10')
            trV(kb+2,0,sl)
        if kb==7: trV(0,1,SG[1]); rdM(0,RING[0]) if False else None
        if kb in(2,5): T('k%d'%kb)
    T(2)
    e('v_subrev_u32 v10, 0x20000, v10')
    MR=[20,24]
    st={'rd':1,'ex':0}
    def v1read(j,tr=True):
        rdM(j,MR[j&1])
        if tr:
            if j&3==0 and j>0: e('v_add_u32 v11, 0x10000, v11')
            trV(j,1,SG[(j+1)&1])
    def v1exec(j):
        sl=SG[(j+1)&1]; sm(AV[1],MR[j&1],f'v[{sl}:{sl+7}]')
        if j+2<9: v1read(j+2)
    v1read(0,tr=False); v1read(1)
    for D in AQ+AK: hadd(D)
    for D in AQ+AK: e(f'v_add_f32 v{D}, v{D}, v{D+2}'); e(f'v_add_f32 v{D+1}, v{D+1}, v{D+3}')
    e(f'v_cvt_pk_bf16_f32 v36, v36, v40'); e(f'v_cvt_pk_bf16_f32 v37, v37, v41'); e(f'v_cvt_pk_bf16_f32 v38, v44, v48'); e(f'v_cvt_pk_bf16_f32 v39, v45, v49')
    e('ds_write_b32 v3, v36'); e('ds_write_b32 v3, v37 offset:80'); e('ds_write_b32 v3, v38 offset:640'); e('ds_write_b32 v3, v39 offset:720')
    e(f'ds_read_b128 {f4(40)}, v4'); e(f'ds_read_b128 {f4(44)}, v5')
    v1exec(0)
    hadd(AV[0]); e('v_add_f32 v52, v52, v54'); e('v_add_f32 v53, v53, v55'); e('v_cvt_pk_bf16_f32 v52, v52, v53'); e('v_mov_b32 v53, 0')
    e('v_mov_b32 v9, v52')
    v1exec(1)
    e(f'v_mfma_f32_16x16x32_bf16 {f4(48)}, {f4(KX0)}, {f4(40)}, 0'); e(f'v_mfma_f32_16x16x32_bf16 {f4(28)}, {f4(KX1)}, {f4(40)}, 0'); e(f'v_mfma_f32_16x16x32_bf16 {f4(36)}, {f4(44)}, {f4(40)}, 0')
    e(f's_add_u32 s74, s28, {hex(VX)}'); e(f'buffer_load_dwordx4 {f4(76)}, v1, s[12:15], s74 offen'); e(f'buffer_load_dwordx4 {f4(32)}, v1, s[12:15], s74 offen offset:1024')
    e(f'buffer_store_dwordx4 {f4(44)}, v1, s[12:15], s29 offen {KST}')
    T(3)
    for i in range(4): e(f'v_cndmask_b32 v{40+i}, v{28+i}, v{48+i}, s[76:77]')
    e('v_cndmask_b32 v44, v37, v36, s[76:77]')
    e(f'ds_write_b128 v6, {f4(40)}'); e('ds_write_b32 v19, v44')
    e.wait(lg=0); e('s_barrier'); T(4)
    SR=[28,36,48,40]
    for w in range(4):
        e(f'ds_read_b128 {f4(SR[w])}, v7 offset:{9216+w*1280}'); e(f'ds_read_b32 v{44+w}, v18 offset:{w*1280}')
    v1exec(2)
    for i in (0,2): e(f'v_pk_add_f32 v[{28+i}:{29+i}], v[{28+i}:{29+i}], v[{36+i}:{37+i}]')
    for i in (0,2): e(f'v_pk_add_f32 v[{48+i}:{49+i}], v[{48+i}:{49+i}], v[{40+i}:{41+i}]')
    e('v_pk_add_f32 v[44:45], v[44:45], v[46:47]')
    for i in (0,2): e(f'v_pk_add_f32 v[{28+i}:{29+i}], v[{28+i}:{29+i}], v[{48+i}:{49+i}]')
    e('v_add_f32 v44, v44, v45')
    V=[28,29,30,31,44]
    def rnd5(t):
        e(f'v_cvt_pk_bf16_f32 v{t}, v28, v29'); e(f'v_cvt_pk_bf16_f32 v{t+1}, v30, v31'); e(f'v_cvt_pk_bf16_f32 v{t+2}, v44, v44')
        e(f'v_lshlrev_b32 v28, 16, v{t}'); e(f'v_and_b32 v29, 0xffff0000, v{t}'); e(f'v_lshlrev_b32 v30, 16, v{t+1}'); e(f'v_and_b32 v31, 0xffff0000, v{t+1}'); e(f'v_lshlrev_b32 v44, 16, v{t+2}')
    def red(x,t,op):
        e(f'v_mov_b32 v{t}, v{x}'); e(f'v_permlane32_swap_b32 v{x}, v{t}'); e(f'{op} v{x}, v{x}, v{t}')
        e(f'v_mov_b32 v{t}, v{x}'); e(f'v_permlane16_swap_b32 v{x}, v{t}'); e(f'{op} v{x}, v{x}, v{t}')
        e(f'{op}_dpp v{x}, v{x}, v{x} row_ror:8 row_mask:0xf bank_mask:0xf')
    T('s')
    rnd5(36)
    v1exec(3)
    for v in V: e(f'v_mul_f32 v{v}, s68, v{v}')
    rnd5(36)
    v1exec(4)
    e('v_max3_f32 v36, v28, v29, v30'); e('v_max3_f32 v36, v36, v31, v44'); red(36,37,'v_max_f32')
    T('m')
    v1exec(5)
    e('v_mul_f32 v36, s69, v36')
    for v in V: e(f'v_fma_f32 v{v}, v{v}, s69, -v36')
    for v in V: e(f'v_exp_f32 v{v}, v{v}')
    v1exec(6)
    e('v_add_f32 v36, v28, v29'); e('v_add_f32 v37, v30, v31'); e('v_add_f32 v36, v36, v44'); e('v_add_f32 v36, v36, v37'); red(36,37,'v_add_f32')
    T('e')
    v1exec(7)
    e('v_rcp_f32 v36, v36')
    for v in V: e(f'v_mul_f32 v{v}, v{v}, v36')
    e('v_cvt_pk_bf16_f32 v40, v28, v29'); e('v_cvt_pk_bf16_f32 v41, v30, v31')
    e('v_mov_b32_dpp v45, v44 row_ror:8 row_mask:0xf bank_mask:0xf')
    e('v_mov_b32_dpp v42, v40 row_ror:8 row_mask:0xf bank_mask:0xf'); e('v_mov_b32_dpp v43, v41 row_ror:8 row_mask:0xf bank_mask:0xf')
    e('v_cvt_pk_bf16_f32 v44, v44, v45'); e('v_mov_b32 v45, 0')
    T(5)
    v1exec(8)
    e(f'v_mfma_f32_16x16x32_bf16 {f4(28)}, {f4(76)}, {f4(40)}, 0'); e(f'v_mfma_f32_16x16x32_bf16 {f4(48)}, {f4(32)}, {f4(40)}, 0')
    hadd(AV[1]); e('v_add_f32 v56, v56, v58'); e('v_add_f32 v57, v57, v59'); e('v_cvt_pk_bf16_f32 v56, v56, v57'); e('v_mov_b32 v57, 0')
    e('v_subrev_u32 v11, 0x20000, v11')
    e(f'v_mfma_f32_16x16x16_bf16 {f4(28)}, v[52:53], v[44:45], {f4(28)}'); e(f'v_mfma_f32_16x16x16_bf16 {f4(48)}, v[56:57], v[44:45], {f4(48)}')
    e('v_mov_b32 v0, v56')
    e('s_cmp_eq_u32 s21, 63'); e.fwd('s_cbranch_scc1',L('C_END'),drain=False)
    WA=[40+4*t for t in range(9)]
    for r in list(range(60,76,2)): e(f'v_mov_b64 v[{r}:{r+1}], 0')
    for r in list(range(40,44,2)): e(f'v_mov_b64 v[{r}:{r+1}], 0')
    for i in range(2): e(f'v_cvt_pk_bf16_f32 v{36+i}, v{28+2*i}, v{29+2*i}')
    for i in range(2): e(f'v_cvt_pk_bf16_f32 v{38+i}, v{48+2*i}, v{49+2*i}')
    e('s_mov_b64 exec, s[76:77]'); e(f'ds_write_b128 v8, {f4(36)}'); e('s_mov_b64 exec, -1')
    if hasattr(e,'chain_wait'): e.chain_wait(e)
    e(f's_add_u32 s74, s28, {1<<18}'); kxl('s74')
    for r in list(range(44,60,2)): e(f'v_mov_b64 v[{r}:{r+1}], 0')
    e.wait(lg=0); e('s_barrier'); T(6)
    e(f'ds_read_b128 {f4(20)}, v7 offset:{OXB-MREG}'); e(f'ds_read_b128 {f4(24)}, v7 offset:{OXB-MREG+1024}')
    for t in range(9): sm(WA[t],20,W8(36+2*t))
    def post(t):
        D=WA[t]; hadd(D); e(f'v_pk_add_f32 v[{D}:{D+1}], v[{D}:{D+1}], v[{D+2}:{D+3}]'); e(f'v_cvt_pk_bf16_f32 v{D}, v{D}, v{D+1}'); e(f'v_and_or_b32 v{D}, v{D}, -2, s27')
        e(f'buffer_store_dword v{D}, v12, s[12:15], s25 offen offset:{t*64} {ST}')
    for t in range(9):
        sm(WA[t],24,W8(36+2*t+1))
        if t>=2: post(t-2)
    post(7); post(8)
    T(7)
    e('v_and_b32 v13, 0x1ff, v1'); e('v_lshrrev_b32 v15, 9, v1'); e('v_mul_u32_u24 v20, 9216, v15'); e('v_add_u32 v20, v20, v13')
    e('v_lshlrev_b32 v13, 1, v13'); e('v_lshlrev_b32 v15, 4, v15'); e('v_add_u32 v13, v13, v15'); e('v_add_u32 v13, s65, v13')
    RB=[60,64,68,72]
    def rl():
        e('s_mov_b64 exec, s[78:79]')
        for i in range(4):
            e(f's_add_u32 s74, s26, {i*2*9216}'); e(f'buffer_load_dwordx4 {f4(RB[i])}, v20, s[12:15], s74 offen sc1')
        e('s_mov_b64 exec, -1')
    def rchk():
        e('v_alignbit_b32 v21, v60, v60, 1'); e('v_alignbit_b32 v22, v61, v61, 1')
        for r in range(62,76,2): e(f'v_alignbit_b32 v21, v{r}, v21, 1'); e(f'v_alignbit_b32 v22, v{r+1}, v22, 1')
        e('v_perm_b32 v21, v21, v22, s71')
        e('v_cmp_ne_u32 vcc, s70, v21'); e('s_and_b64 vcc, vcc, s[78:79]')
    for d in range(4): e(f'v_cmp_eq_u32 vcc, {d}, v17'); e(f'v_cndmask_b32 v{40+d}, 0, v14, vcc')
    rl()
    T(8)
    rchk()
    rt=e.u('rr'); ok=e.u('ro')
    e.hzflush(); e.L.append(f'  s_cbranch_vccz {ok}'); e.L.append(rt+':')
    e('s_sub_u32 s31, s31, 1'); e.L.append(f'  s_cbranch_scc1 {ok}_x')
    rl(); e.wait(vm=0); rchk(); e.hzflush(); e.L.append(f'  s_cbranch_vccnz {rt}')
    e.L.append(f'  s_branch {ok}'); e.L.append(f'{ok}_x:'); e.L.append('  s_mov_b32 s31, 0'); e.L.append(ok+':'); e.vm=[]; e.h=[]
    T(9)
    for i in range(4): e(f'v_mfma_f32_32x32x16_bf16 v[44:59], {f4(40)}, {f4(RB[i])}, {"v[44:59]" if i else 0}')
    e('s_mov_b64 exec, s[78:79]'); e(f'ds_write_b128 v13, {f4(44)}'); e('s_mov_b64 exec, -1')
    e.wait(lg=0); e('s_barrier'); T(10)
    nf=e.u('nf'); e('s_cmp_ge_u32 s3, 2'); e.L.append(f'  s_cbranch_scc1 {nf}')
    e('v_add_u32 v13, s63, v7')
    for w in range(4): e(f'ds_read_b64 v[{20+2*w}:{21+2*w}], v13 offset:{9216+640+w*1280}')
    e('v_add_f32 v20, v20, v22'); e('v_add_f32 v21, v21, v23'); e('v_add_f32 v24, v24, v26'); e('v_add_f32 v25, v25, v27'); e('v_add_f32 v20, v20, v24'); e('v_add_f32 v21, v21, v25')
    e('v_cvt_pk_bf16_f32 v20, v20, v21'); e('v_mov_b32 v21, -1')
    e('s_mov_b64 exec, s[44:45]')
    e(f'buffer_store_dword v20, v16, s[12:15], s23 offen {ST}'); e(f'buffer_store_dword v21, v16, s[12:15], s24 offen {ST}')
    e('s_mov_b64 exec, -1')
    e.L.append(nf+':'); e.h=[]
    if os.environ.get('FB','1')=='1': e('s_barrier')
    T(11)
    if PROF>=0:
        pl=e.u('pf'); e(f's_cmp_lg_u32 s21, {PROF}'); e.L.append(f'  s_cbranch_scc1 {pl}')
        e.L.append('  s_waitcnt lgkmcnt(0)')
        e('s_lshl_b32 s74, s20, 2'); e('s_add_u32 s74, s74, s3'); e('s_lshl_b32 s74, s74, 6'); e('s_add_u32 s74, s74, 1024'); e('v_mov_b32 v60, s74')
        e('s_mov_b32 s18, 16384'); e('s_mov_b64 exec, 1')
        for i in range(12):
            e(f'v_mov_b32 v61, s{SP[i]}'); e(f'buffer_store_dword v61, v60, s[16:19], 0 offen offset:{4*i}')
        e('v_mov_b32 v61, s31'); e('buffer_store_dword v61, v60, s[16:19], 0 offen offset:48')
        e('s_mov_b64 exec, -1'); e.L.append('  s_waitcnt vmcnt(0)'); e.L.append(pl+':'); e.vm=[]; e.h=[]
    e('s_mov_b32 s74, s22'); e('s_mov_b32 s22, s23'); e('s_mov_b32 s23, s24'); e('s_mov_b32 s24, s74')
    e('s_xor_b32 s27, s27, 1'); e('s_xor_b32 s70, s70, 0xffff')
    e(f's_add_u32 s28, s28, {1<<18}'); e(f's_add_u32 s29, s29, {1<<17}'); e(f's_add_u32 s30, s30, {1<<16}')
    e('s_add_u32 s21, s21, 1')
    e.hzflush(); e.L.append(f'  s_branch {L("C_STEP")}'); e.vm=[]; e.lg=[]
    e.label(L('C_END'))
    vmst(0)
    if hasattr(e,'chain_post'): e.chain_post(e)
```

```python
from em import *; from lay import *
from kx import softmax,SCALE,LOG2E
MREG=147456; QS=MREG+9216; OXB=QS+5120
PSZ=32*9216
def W8(F): return vr(8*F,8,'a') if F<32 else vr(80+8*(F-32),8)
def W2(F,i): return vr(8*F+2*i,2,'a') if F<32 else vr(80+8*(F-32)+2*i,2)
f4=lambda b:f'v[{b}:{b+3}]'
def junk(e,x):
    e.L.append('  '+x); e.t+=1; e.vm.append(set())
def team(e):
    e('s_load_dwordx2 s[4:5], s[0:1], 136'); e.smwait(); srd(e,16,4,256)
    e('s_getreg_b32 s10, hwreg(HW_REG_XCC_ID, 0, 4)')
    e('s_cmp_lg_u32 s3, 0'); e.fwd('s_cbranch_scc1','T_WAIT')
    e('s_mov_b64 s[26:27], exec'); e('s_mov_b64 exec, 1')
    e('s_lshl_b32 s25, s10, 2'); e('v_mov_b32 v3, s25'); e('v_mov_b32 v4, 1'); e('v_mov_b32 v5, 1'); e('v_mov_b32 v6, 68')
    e('buffer_atomic_add v4, v3, s[16:19], 0 offen sc0'); e('buffer_atomic_add v5, v6, s[16:19], 0 offen sc0 sc1')
    e('v_readfirstlane_b32 s28, v4'); e('v_readfirstlane_b32 s29, v5')
    e('v_mov_b32 v3, 64')
    e('s_cmp_eq_u32 s28, 31'); e.fwd('s_cbranch_scc0','T_NL')
    e('s_add_u32 s30, s10, 1'); e('v_mov_b32 v4, s30'); e('v_mov_b32 v5, 0')
    e('buffer_atomic_cmpswap v[4:5], v3, s[16:19], 0 offen sc0 sc1')
    e.label('T_NL'); e('s_mov_b32 s30, 0')
    e.label('T_POLL')
    e('buffer_load_dword v4, v3, s[16:19], 0 offen sc1'); e('v_readfirstlane_b32 s31, v4')
    e('s_cmp_lg_u32 s31, 0'); e.fwd('s_cbranch_scc1','T_DONE')
    e('s_add_u32 s30, s30, 1'); e('s_cmp_lt_u32 s30, 3000'); e.back('s_cbranch_scc1','T_POLL')
    e('v_mov_b32 v4, 100'); e('v_mov_b32 v5, 0'); e('buffer_atomic_cmpswap v[4:5], v3, s[16:19], 0 offen sc0 sc1'); e.wait(vm=0)
    e('s_mov_b32 s30, 2990'); e.back('s_branch','T_POLL')
    e.label('T_DONE')
    e('s_mov_b32 s20, 0xffff'); e('s_mov_b32 s35, 0')
    e('s_add_u32 s30, s10, 1'); e('s_cmp_eq_u32 s31, s30'); e('s_cselect_b32 s20, s28, s20')
    e('s_cmp_eq_u32 s31, 100'); e('s_cselect_b32 s20, s29, s20'); e('s_cselect_b32 s35, 1, 0')
    e('v_mov_b32 v4, s20'); e('v_mov_b32 v5, s35'); e('v_mov_b32 v3, 0'); e('ds_write_b64 v3, v[4:5])'.replace(')','')); e.wait(lg=0)
    e('s_mov_b64 exec, s[26:27]')
    e.label('T_WAIT'); e('s_barrier')
    e('v_mov_b32 v3, 0'); e('ds_read_b64 v[4:5], v3'); e('v_readfirstlane_b32 s20, v4'); e('v_readfirstlane_b32 s35, v5'); e.wait(lg=0); e('s_barrier')
def chain_setup(e):
    e('s_load_dwordx2 s[8:9], s[0:1], 144'); e('s_load_dwordx2 s[36:37], s[0:1], 16'); e('s_load_dwordx2 s[38:39], s[0:1], 24')
    e('s_load_dwordx2 s[40:41], s[0:1], 32'); e('s_load_dwordx2 s[42:43], s[0:1], 40'); e('s_load_dwordx2 s[44:45], s[0:1], 8'); e.smwait()
    srd(e,12,8,hex(0x8000000))
    e('v_and_b32 v20, 63, v0'); e('v_lshlrev_b32 v1, 4, v20')
    e('v_lshrrev_b32 v21, 4, v20')
    e('v_and_b32 v22, 15, v20')
    e('v_and_b32 v23, 3, v20'); e('v_lshrrev_b32 v24, 2, v22')
    e('v_mov_b32 v28, -1'); e('v_mov_b32 v29, -1'); e('v_mov_b32 v30, -1'); e('v_mov_b32 v31, -1')
    e('s_mul_i32 s46, s20, 9216'); e('s_mul_i32 s47, s3, 2304'); e('s_add_u32 s46, s46, s47'); e(f's_add_u32 s46, s46, {hex(PB)}')
    return
def st_init(e,ST):
    for b in range(1):
        for i in range(3):
            if i==2: e('s_mov_b64 exec, 0xffff')
            e(f's_add_u32 s47, s46, {b*PSZ+i*1024}'); e(f'buffer_store_dwordx4 v[28:31], v1, s[12:15], s47 offen {ST}')
        e('s_mov_b64 exec, -1')
def gen_chain(e,ST,sfx,fused=False,KST='sc1'):
    L=lambda n:n+sfx
    chain_setup(e); st_init(e,ST)
    e('s_lshr_b32 s48, s20, 2'); e('s_and_b32 s49, s20, 3')
    e('s_mul_i32 s50, s48, 72'); e('v_lshlrev_b32 v25, 1, v20'); e('v_add_u32 v25, s50, v25')
    e('v_lshrrev_b32 v26, 3, v25'); e('v_lshlrev_b32 v26, 7, v26'); e('v_and_b32 v27, 7, v25'); e('v_lshlrev_b32 v27, 1, v27'); e('v_add_u32 v26, v26, v27')
    e('s_and_b32 s50, s49, 1'); e('s_lshl_b32 s50, s50, 2'); e('s_lshr_b32 s51, s49, 1'); e('s_lshl_b32 s51, s51, 1'); e('s_add_u32 s50, s50, s51')
    e('s_and_b32 s51, s3, 1'); e('s_add_u32 s50, s50, s51')
    e('s_lshl_b32 s51, s50, 4'); e('v_add_u32 v16, s51, v26')
    srd(e,4,44,9216)
    e('s_mul_i32 s51, s50, 1152'); e('v_lshlrev_b32 v27, 1, v25'); e('v_add_u32 v27, s51, v27')
    e('s_mov_b32 s52, -1'); e('s_mov_b32 s53, 15')
    e('s_cmp_lt_u32 s3, 2'); e('s_cselect_b64 s[52:53], s[52:53], 0')
    e('s_mov_b64 exec, s[52:53]')
    lab=L('C_NOINIT'); e.fwd('s_cbranch_execz',lab)
    e('buffer_load_dword v32, v27, s[4:7], 0 offen'); e('v_mov_b32 v33, -1')
    e(f's_mov_b32 s47, {hex(MB)}'); e(f'buffer_store_dword v32, v16, s[12:15], s47 offen {ST}')
    e(f's_mov_b32 s47, {hex(MB+9216)}'); e(f'buffer_store_dword v33, v16, s[12:15], s47 offen {ST}')
    e(f's_mov_b32 s47, {hex(MB+2*9216)}'); e(f'buffer_store_dword v33, v16, s[12:15], s47 offen {ST}')
    e.label(lab); e('s_mov_b64 exec, -1')
    e.wait(vm=0); e('s_barrier')
    e('s_cmp_lg_u32 s3, 0'); lab=L('C_NOSIG'); e.fwd('s_cbranch_scc1',lab)
    e('s_mov_b64 exec, 1'); e('v_mov_b32 v32, 1'); e('v_mov_b32 v33, 72'); e('buffer_atomic_add v32, v33, s[16:19], 0 offen sc1'); e('s_mov_b64 exec, -1')
    e.label(lab)
    e('v_and_b32 v34, 1, v21'); e('s_and_b32 s50, s3, 1'); e('s_lshl_b32 s50, s50, 1'); e('s_lshr_b32 s51, s3, 1'); e('s_lshl_b32 s51, s51, 2'); e('s_add_u32 s50, s50, s51')
    e('v_add_u32 v34, s50, v34'); e('v_lshlrev_b32 v34, 1, v34'); e('v_xor_b32 v34, v34, v22'); e('v_lshlrev_b32 v34, 4, v34')
    e('v_lshlrev_b32 v35, 13, v21'); e('v_add_u32 v32, v34, v35')
    e('v_lshrrev_b32 v34, 5, v20'); e('s_and_b32 s50, s3, 1'); e('s_lshl_b32 s50, s50, 1'); e('v_add_u32 v34, s50, v34'); e('v_lshlrev_b32 v34, 1, v34')
    e('v_and_b32 v35, 7, v20'); e('v_xor_b32 v34, v34, v35'); e('v_lshlrev_b32 v34, 4, v34'); e('v_lshrrev_b32 v35, 3, v20'); e('v_mul_u32_u24 v35, 1152, v35'); e('v_add_u32 v33, v34, v35')
    srd(e,56,36,576*8192); srd(e,60,38,576*8192); srd(e,64,40,576*8192); srd(e,68,42,32*128*1152)
    e('s_lshl_b32 s50, s20, 8'); e('s_lshl_b32 s51, s3, 15'); e('s_add_u32 s50, s50, s51')
    e('s_lshl_b32 s51, s3, 10')
    e('s_mul_i32 s72, s20, %d'%(128*1152)); e('s_mul_i32 s73, s3, %d'%(16*1152)); e('s_add_u32 s72, s72, s73')
    e('s_lshl_b32 s73, s3, 11')
    def dmaW(sr,half,buf,tag):
        for j in range(18):
            e(f's_add_u32 s74, s50, {(288*half+16*j)*8192}'); e(f's_add_u32 m0, s51, {buf+j*4096}')
            e.dma(f'buffer_load_dwordx4 v32, s[{sr}:{sr+3}], s74 offen lds',tag)
    def dmaO(kb,buf,tag):
        for cb in range(9):
            for a in range(2):
                e(f's_add_u32 s74, s72, {(64*kb+8*a)*1152+cb*128}'); e(f's_add_u32 m0, s73, {buf+cb*8192+a*1024}')
                e.dma('buffer_load_dwordx4 v33, s[68:71], s74 offen lds',tag)
    e('v_lshrrev_b32 v34, 1, v21'); e('v_lshlrev_b32 v34, 4, v34'); e('v_and_b32 v35, 1, v21'); e('v_lshlrev_b32 v36, 2, v35'); e('v_add_u32 v34, v34, v36')
    e('v_lshrrev_b32 v36, 1, v24'); e('v_lshlrev_b32 v37, 3, v36'); e('v_add_u32 v34, v34, v37'); e('v_and_b32 v37, 1, v24'); e('v_add_u32 v34, v34, v37'); e('v_lshlrev_b32 v34, 8, v34')
    e('v_lshlrev_b32 v35, 1, v35'); e('v_add_u32 v35, v35, v37'); e('v_lshlrev_b32 v36, 2, v36'); e('v_add_u32 v35, v35, v36'); e('v_lshlrev_b32 v35, 1, v35')
    e('v_and_b32 v36, 1, v23'); e('v_lshlrev_b32 v36, 3, v36'); e('v_add_u32 v34, v34, v36'); e('v_lshrrev_b32 v36, 1, v23')
    for ct in range(2):
        e('s_lshl_b32 s74, s3, 2'); e(f's_add_u32 s74, s74, {2*ct}'); e('v_add_u32 v37, s74, v36'); e('v_xor_b32 v37, v37, v35'); e('v_lshlrev_b32 v37, 4, v37'); e(f'v_add_u32 v{10+ct}, v34, v37')
    e('v_and_b32 v34, 1, v21'); e('v_lshlrev_b32 v35, 4, v34'); e('v_lshrrev_b32 v37, 1, v21'); e('v_lshlrev_b32 v37, 3, v37'); e('v_add_u32 v35, v35, v37')
    e('v_lshrrev_b32 v37, 1, v24'); e('v_lshlrev_b32 v39, 2, v37'); e('v_add_u32 v35, v35, v39'); e('v_and_b32 v39, 1, v24'); e('v_add_u32 v35, v35, v39'); e('v_lshlrev_b32 v38, 7, v35')
    e('v_lshlrev_b32 v34, 1, v34'); e('v_add_u32 v39, v34, v37')
    e('v_and_b32 v34, 1, v23'); e('v_lshlrev_b32 v34, 3, v34'); e('v_add_u32 v38, v38, v34'); e('v_lshlrev_b32 v34, 4, v36'); e('v_add_u32 v38, v38, v34')
    def rdW(F0,half,buf):
        for kb in range(9):
            for j2 in range(2):
                row=64*kb+32*j2
                if (row>=288)!=(half==1): continue
                for ct in range(2):
                    for q in range(2):
                        off=buf+(row-288*half+2*q)*256
                        rd_tr(W2(F0+ct*9+kb,2*j2+q),10+ct,off)
    def rd_tr(d,a,off):
        if off<65536: e(f'ds_read_b64_tr_b16 {d}, v{a} offset:{off}')
        else:
            e(f'v_add_u32 v40, {off&~0xffff}, v{a}'); e(f'ds_read_b64_tr_b16 {d}, v40 offset:{off&0xffff}')
    def rdO(kb,buf):
        for tt in range(9):
            e('s_mul_i32 s74, s3, 9'); e(f's_add_u32 s74, s74, {tt}'); e('s_and_b32 s75, s74, 3'); e('s_lshr_b32 s74, s74, 2'); e('s_lshl_b32 s74, s74, 13'); e(f's_add_u32 s74, s74, {buf}')
            e('v_xor_b32 v41, s75, v39'); e('v_lshlrev_b32 v41, 5, v41'); e('v_add_u32 v41, v41, v38'); e('v_add_u32 v41, s74, v41')
            for j2 in range(2):
                for q in range(2): e(f'ds_read_b64_tr_b16 {W2(36+tt*2+kb,2*j2+q)}, v41 offset:{(32*j2+2*q)*128}')
    A,B=0,73728
    seq=[('q',0),('q',1),('k',0),('k',1),('o',0),('o',1),('v',0),('v',1)]
    def issue(i):
        m,hf=seq[i]; buf=A if i%2==0 else B
        if m=='o': dmaO(hf,buf,f'#c{i}')
        else: dmaW({'q':56,'k':60,'v':64}[m],hf,buf,f'#c{i}')
    issue(0); issue(1)
    for i in range(6):
        m,hf=seq[i]; buf=A if i%2==0 else B
        e.need(f'#c{i}'); e('s_barrier')
        if m=='o': rdO(hf,buf)
        else: rdW({'q':0,'k':18}[m],hf,buf)
        e.wait(lg=0); e('s_barrier'); issue(i+2)
    e.wait(vm=0); e('s_barrier')
    e('s_lshl_b32 s74, s3, 12'); e('v_add_u32 v42, s74, v1')
    for r3 in range(5):
        nb=2 if r3<4 else 1
        for b in range(nb):
            kb=2*r3+b
            for ct in range(2):
                for j2 in range(2):
                    for q in range(2):
                        d=44+16*b+8*ct+4*j2+2*q
                        rd_tr(f'v[{d}:{d+1}]',10+ct,kb*16384+j2*8192+q*512)
        e.wait(lg=0); e('s_barrier')
        for b in range(nb):
            kb=2*r3+b
            e(f'v_add_u32 v43, {kb*16384}, v42')
            for ct in range(2):
                for hf in range(2): e(f'ds_write_b128 v43, {f4(44+16*b+8*ct+4*hf)} offset:{ct*2048+hf*1024}')
        e.wait(lg=0)
    e('v_mov_b32 v10, v42'); e('v_mov_b32 v11, v42')
    e('s_barrier')
    e('v_mov_b32 v2, 0x44444444'); e('v_mov_b32 v34, 0xeeeeeeee'); e('v_cmp_gt_u32 vcc, 8, v22'); e('v_cndmask_b32 v2, v34, v2, vcc')
    e(f's_mul_i32 s74, s3, 1280'); e(f's_add_u32 s74, s74, {QS}')
    e('v_and_b32 v34, 1, v21'); e('v_lshlrev_b32 v34, 2, v34'); e('v_lshrrev_b32 v35, 1, v21'); e('v_lshlrev_b32 v35, 1, v35'); e('v_add_u32 v34, v34, v35')
    e('v_mul_u32_u24 v34, 80, v34'); e('v_lshlrev_b32 v35, 2, v22'); e('v_add_u32 v34, v34, v35'); e('v_add_u32 v3, s74, v34')
    e('v_and_b32 v34, 7, v20'); e('v_mul_u32_u24 v34, 80, v34'); e('v_lshlrev_b32 v35, 4, v21'); e('v_add_u32 v34, v34, v35'); e('v_add_u32 v4, s74, v34')
    e('v_and_b32 v34, 1, v24'); e('v_lshlrev_b32 v34, 2, v34'); e('v_lshrrev_b32 v36, 1, v24'); e('v_lshlrev_b32 v36, 1, v36'); e('v_add_u32 v34, v34, v36'); e('v_and_b32 v36, 1, v22'); e('v_add_u32 v34, v34, v36')
    e('v_mul_u32_u24 v34, 80, v34'); e('v_add_u32 v34, v34, v35'); e('v_add_u32 v5, s74, v34'); e('v_add_u32 v5, 640, v5')
    e('v_add_u32 v6, s74, v1'); e(f'v_add_u32 v7, {MREG}, v1')
    e('v_lshlrev_b32 v35, 2, v20'); e(f'v_add_u32 v18, {QS+1024}, v35'); e('s_mul_i32 s75, s3, 1280'); e('v_add_u32 v19, s75, v18')
    e('v_lshlrev_b32 v34, 3, v21'); e('v_and_b32 v35, 7, v20'); e('v_add_u32 v34, v34, v35'); e('v_lshlrev_b32 v35, 4, v34')
    e('s_lshl_b32 s75, s3, 9'); e(f's_add_u32 s75, s75, {OXB}'); e('v_add_u32 v8, s75, v35')
    e('v_mul_u32_u24 v34, 2304, v21'); e('v_lshlrev_b32 v35, 2, v22'); e('v_add_u32 v34, v34, v35'); e('s_mul_i32 s75, s3, 576'); e('v_add_u32 v12, s75, v34'); e('v_mul_u32_u24 v35, 12, v22'); e('v_add_u32 v9, v12, v35')
    e('v_and_b32 v34, 31, v20'); e('v_lshrrev_b32 v35, 2, v34'); e('v_lshlrev_b32 v35, 1, v35'); e('v_and_b32 v36, 1, v34'); e('v_add_u32 v17, v35, v36')
    e('v_mov_b32 v36, 99'); e('v_cmp_gt_u32 vcc, 8, v34'); e('v_cndmask_b32 v17, v36, v17, vcc')
    e('v_and_b32 v36, 2, v34'); e('v_mov_b32 v14, 0x3f80'); e('v_mov_b32 v35, 0x3f800000'); e('v_cmp_eq_u32 vcc, 2, v36'); e('v_cndmask_b32 v14, v14, v35, vcc')
    e('s_mov_b32 s21, 0'); e(f's_mov_b32 s22, {hex(MB)}'); e(f's_mov_b32 s23, {hex(MB+9216)}'); e(f's_mov_b32 s24, {hex(MB+18432)}')
    e('s_mul_i32 s80, s20, 9216'); e(f's_add_u32 s80, s80, {hex(PB)}')
    e('s_mul_i32 s81, s49, 2304'); e('s_mul_i32 s74, s48, 288'); e('s_add_u32 s81, s81, s74'); e('s_mul_i32 s74, s3, %d'%(8*9216)); e('s_add_u32 s81, s81, s74'); e(f's_add_u32 s81, s81, {hex(PB)}')
    e('s_mul_i32 s70, s3, 2304'); e('s_add_u32 s70, s70, s80')
    e('s_mov_b32 s25, s80'); e('s_mov_b32 s26, s81'); e('s_mov_b32 s27, 0'); e('s_mov_b32 s70, 0')
    e('s_lshl_b32 s28, s20, 13'); e('s_lshl_b32 s74, s3, 11'); e('s_add_u32 s28, s28, s74')
    e('s_lshl_b32 s29, s20, 12'); e('s_lshl_b32 s74, s3, 10'); e('s_add_u32 s29, s29, s74'); e(f's_add_u32 s29, s29, {hex(KM)}')
    e('s_lshl_b32 s30, s20, 11'); e('s_lshl_b32 s74, s3, 9'); e('s_add_u32 s30, s30, s74'); e(f's_add_u32 s30, s30, {hex(VM)}')
    e('s_mov_b32 s31, 0x20000')
    e(f's_mov_b32 s68, {hex(SCALE)}'); e(f's_mov_b32 s69, {hex(LOG2E)}')
    e('s_mov_b32 s76, 0x00ff00ff'); e('s_mov_b32 s77, s76')
    e('s_mov_b32 s78, 0x3ffff'); e('s_mov_b32 s79, 0x3ffff')
    e('s_lshl_b32 s64, s3, 11')
    e('s_lshl_b32 s74, s3, 4'); e('s_mov_b64 s[66:67], 0xffff'); e('s_lshl_b64 s[66:67], s[66:67], s74')
    e('s_mul_i32 s65, s3, 1280'); e(f's_add_u32 s65, s65, {QS+640}')
    e('s_and_b32 s63, s3, 1'); e('s_lshl_b32 s63, s63, 3')
    e('s_mov_b32 s44, -1'); e('s_mov_b32 s45, 15'); e('s_mov_b32 s71, 0x0c0c0703')
    e('v_mov_b32 v33, 72'); e('s_mov_b32 s74, 0')
    e.label(L('C_RDY'))
    e('buffer_load_dword v32, v33, s[16:19], 0 offen sc1'); e('v_readfirstlane_b32 s75, v32'); e('s_add_u32 s74, s74, 1')
    e('s_cmp_ge_u32 s75, 32'); e.fwd('s_cbranch_scc1',L('C_GO')); e('s_cmp_lt_u32 s74, 20000'); e.back('s_cbranch_scc1',L('C_RDY'))
    e.label(L('C_GO')); e.wait(vm=0); e('s_barrier')
    step_loop(e,ST,sfx,fused,KST)
def chk_retry(e,regs4list,offs,name):
    def chk():
        first=True
        for b in regs4list:
            if first: e(f'v_max3_u32 v79, v{b}, v{b+1}, v{b+2}'); e(f'v_max_u32 v79, v79, v{b+3}'); first=False
            else: e(f'v_max3_u32 v79, v79, v{b}, v{b+1}'); e(f'v_max3_u32 v79, v79, v{b+2}, v{b+3}')
        e('v_cmp_eq_u32 vcc, -1, v79')
    chk()
    ok=e.u(name+'ok'); rt=e.u(name+'rt')
    sv=([set(q) for q in e.vm],[set(q) for q in e.lg]); hv=(list(e.h),e.t+1)
    e.L.append(f'  s_cbranch_vccz {ok}')
    e.L.append(rt+':')
    e('s_sub_u32 s31, s31, 1'); e.L.append(f'  s_cbranch_scc1 {ok}_x')
    for b,o in zip(regs4list,offs): e(mload(b,o))
    e.wait(vm=0); chk(); e.L.append(f'  s_cbranch_vccnz {rt}')
    e.L.append(f'  s_branch {ok}'); e.L.append(f'{ok}_x:'); e.L.append('  s_mov_b32 s31, 0'); e.L.append(ok+':')
    e.vm,e.lg=sv; e.h,e.t=hv
def mload(b,kb):
    return f'buffer_load_dwordx4 {f4(b)}, v1, s[12:15], s22 offen offset:{kb*1024} sc1' if kb<4 else f'buffer_load_dwordx4 {f4(b)}, v78, s[12:15], s22 offen offset:{(kb&3)*1024} sc1' if kb<8 else f'buffer_load_dwordx4 {f4(b)}, v77, s[12:15], s22 offen sc1'
def step_loop(e,ST,sfx,fused,KST):
    L=lambda n:n+sfx
    import os
    PROF=int(os.environ.get('PROF','-1'))
    SP=[82+2*i for i in range(10)]+[56,58]
    PS=os.environ.get('PSET','0,1,2,3,4,5,6,7,8,9,10,11').split(',')
    def T(i):
        i=str(i)
        if PROF>=0 and i in PS: k=PS.index(i); e.L.append(f'  s_memtime s[{SP[k]}:{SP[k]+1}]')
    AQ=[36,40]; AK=[44,48]; AV=[52,56]; SG=[60,68]
    sm=lambda D,A,Bm:e(f'v_smfmac_f32_16x16x64_bf16 {f4(D)}, {f4(A)}, {Bm}, v2')
    def trV(kb,ct,slot):
        for hf in range(2): e(f'ds_read_b128 {f4(slot+4*hf)}, v{10+ct} offset:{(kb&3)*16384+ct*2048+hf*1024}')
    def hadd(D):
        e(f'v_permlane32_swap_b32 v{D}, v{D+2}'); e(f'v_permlane32_swap_b32 v{D+1}, v{D+3}')
    def rdM(kb,d): e(f'ds_read_b128 {f4(d)}, v7 offset:{kb*1024}')
    KX0,KX1=32,76; KXM=''
    def kxl(so): e(f'buffer_load_dwordx4 {f4(KX0)}, v1, s[12:15], {so} offen {KXM}'); e(f'buffer_load_dwordx4 {f4(KX1)}, v1, s[12:15], {so} offen offset:1024 {KXM}')
    def vmst(back):
        e('v_lshrrev_b32 v15, 2, v1'); e(f's_sub_u32 s74, s30, {back}')
        e(f'buffer_store_dword v9, v15, s[12:15], s74 offen {KST}'); e(f'buffer_store_dword v0, v15, s[12:15], s74 offen offset:256 {KST}')
    if hasattr(e,'chain_wait0'): e.chain_wait0(e)
    kxl('s28')
    e.label(L('C_STEP'))
    T(0)
    e('s_add_u32 s72, s22, s64'); e('s_add_u32 s73, s22, 8192')
    e('v_mov_b64 v[28:29], 0'); e('v_mov_b64 v[30:31], 0')
    def mld():
        e(f'buffer_load_dwordx4 {f4(20)}, v1, s[12:15], s72 offen sc1'); e(f'buffer_load_dwordx4 {f4(24)}, v1, s[12:15], s72 offen offset:1024 sc1')
        e('s_mov_b64 exec, s[66:67]'); e(f'buffer_load_dwordx4 {f4(28)}, v1, s[12:15], s73 offen sc1'); e('s_mov_b64 exec, -1')
    def mchk():
        e('v_max3_u32 v15, v20, v21, v22'); e('v_max3_u32 v15, v15, v23, v24'); e('v_max3_u32 v15, v15, v25, v26'); e('v_max3_u32 v15, v15, v27, v28'); e('v_max3_u32 v15, v15, v29, v30'); e('v_max_u32 v15, v15, v31')
        e('v_cmp_eq_u32 vcc, -1, v15')
    trV(0,0,SG[0]); trV(1,0,SG[1])
    for r in range(36,60,2): e(f'v_mov_b64 v[{r}:{r+1}], 0')
    mld()
    e('v_add_u32 v13, s64, v7')
    mchk()
    ok=e.u('mok'); rt=e.u('mrt')
    sv=([set(q) for q in e.vm],[set(q) for q in e.lg]);
    e.hzflush(); e.L.append(f'  s_cbranch_vccz {ok}'); e.L.append(rt+':')
    e('s_sub_u32 s31, s31, 1'); e.L.append(f'  s_cbranch_scc1 {ok}_x')
    mld(); e.wait(vm=0); mchk(); e.hzflush(); e.L.append(f'  s_cbranch_vccnz {rt}')
    e.L.append(f'  s_branch {ok}'); e.L.append(f'{ok}_x:'); e.L.append('  s_mov_b32 s31, 0'); e.L.append(ok+':')
    e.vm=[]; e.lg=sv[1]; e.h=[]
    T(1)
    e(f'ds_write_b128 v13, {f4(20)}'); e(f'ds_write_b128 v13, {f4(24)} offset:1024')
    e('s_mov_b64 exec, s[66:67]'); e(f'ds_write_b128 v7, {f4(28)} offset:8192'); e('s_mov_b64 exec, -1')
    sk=e.u('sk'); e('s_cmp_eq_u32 s21, 0'); e.L.append(f'  s_cbranch_scc1 {sk}')
    vmst(1<<16)
    e.hzflush(); e.L.append(sk+':'); e.h=[]
    e('v_lshlrev_b32 v15, 2, v1'); e(f's_add_u32 s75, s28, {hex(VX+(1<<18))}')
    e('s_mov_b32 exec_hi, 0'); junk(e,'buffer_load_dword v0, v15, s[12:15], s75 offen')
    e(f's_add_u32 s74, s28, {2<<18}'); e(f's_min_u32 s74, s74, {hex(0x1000000-2048)}'); junk(e,'buffer_load_dword v0, v15, s[12:15], s74 offen'); e('s_mov_b64 exec, -1')
    e.wait(lg=0); e('s_barrier'); T('b')
    RING=[20,24,28]
    for kb in range(3): rdM(kb,RING[kb])
    for kb in range(9):
        a=RING[kb%3]
        sm(AQ[0],a,W8(kb)); sm(AK[0],a,W8(18+kb)); sm(AQ[1],a,W8(9+kb)); sm(AK[1],a,W8(27+kb))
        sl=SG[kb&1]; sm(AV[0],a,f'v[{sl}:{sl+7}]')
        if kb+3<9: rdM(kb+3,a)
        if kb+2<9:
            if (kb+2)&3==0: e('v_add_u32 v10, 0x10000, v10')
            trV(kb+2,0,sl)
        if kb==7: trV(0,1,SG[1]); rdM(0,RING[0]) if False else None
        if kb in(2,5): T('k%d'%kb)
    T(2)
    e('v_subrev_u32 v10, 0x20000, v10')
    MR=[20,24]
    st={'rd':1,'ex':0}
    def v1read(j,tr=True):
        rdM(j,MR[j&1])
        if tr:
            if j&3==0 and j>0: e('v_add_u32 v11, 0x10000, v11')
            trV(j,1,SG[(j+1)&1])
    def v1exec(j):
        sl=SG[(j+1)&1]; sm(AV[1],MR[j&1],f'v[{sl}:{sl+7}]')
        if j+2<9: v1read(j+2)
    v1read(0,tr=False); v1read(1)
    for D in AQ+AK: hadd(D)
    for D in AQ+AK: e(f'v_add_f32 v{D}, v{D}, v{D+2}'); e(f'v_add_f32 v{D+1}, v{D+1}, v{D+3}')
    e(f'v_cvt_pk_bf16_f32 v36, v36, v40'); e(f'v_cvt_pk_bf16_f32 v37, v37, v41'); e(f'v_cvt_pk_bf16_f32 v38, v44, v48'); e(f'v_cvt_pk_bf16_f32 v39, v45, v49')
    e('ds_write_b32 v3, v36'); e('ds_write_b32 v3, v37 offset:80'); e('ds_write_b32 v3, v38 offset:640'); e('ds_write_b32 v3, v39 offset:720')
    e(f'ds_read_b128 {f4(40)}, v4'); e(f'ds_read_b128 {f4(44)}, v5')
    v1exec(0)
    hadd(AV[0]); e('v_add_f32 v52, v52, v54'); e('v_add_f32 v53, v53, v55'); e('v_cvt_pk_bf16_f32 v52, v52, v53'); e('v_mov_b32 v53, 0')
    e('v_mov_b32 v9, v52')
    v1exec(1)
    e(f'v_mfma_f32_16x16x32_bf16 {f4(48)}, {f4(KX0)}, {f4(40)}, 0'); e(f'v_mfma_f32_16x16x32_bf16 {f4(28)}, {f4(KX1)}, {f4(40)}, 0'); e(f'v_mfma_f32_16x16x32_bf16 {f4(36)}, {f4(44)}, {f4(40)}, 0')
    e(f's_add_u32 s74, s28, {hex(VX)}'); e(f'buffer_load_dwordx4 {f4(76)}, v1, s[12:15], s74 offen'); e(f'buffer_load_dwordx4 {f4(32)}, v1, s[12:15], s74 offen offset:1024')
    e(f'buffer_store_dwordx4 {f4(44)}, v1, s[12:15], s29 offen {KST}')
    T(3)
    for i in range(4): e(f'v_cndmask_b32 v{40+i}, v{28+i}, v{48+i}, s[76:77]')
    e('v_cndmask_b32 v44, v37, v36, s[76:77]')
    e(f'ds_write_b128 v6, {f4(40)}'); e('ds_write_b32 v19, v44')
    e.wait(lg=0); e('s_barrier'); T(4)
    SR=[28,36,48,40]
    for w in range(4):
        e(f'ds_read_b128 {f4(SR[w])}, v7 offset:{9216+w*1280}'); e(f'ds_read_b32 v{44+w}, v18 offset:{w*1280}')
    v1exec(2)
    for i in (0,2): e(f'v_pk_add_f32 v[{28+i}:{29+i}], v[{28+i}:{29+i}], v[{36+i}:{37+i}]')
    for i in (0,2): e(f'v_pk_add_f32 v[{48+i}:{49+i}], v[{48+i}:{49+i}], v[{40+i}:{41+i}]')
    e('v_pk_add_f32 v[44:45], v[44:45], v[46:47]')
    for i in (0,2): e(f'v_pk_add_f32 v[{28+i}:{29+i}], v[{28+i}:{29+i}], v[{48+i}:{49+i}]')
    e('v_add_f32 v44, v44, v45')
    V=[28,29,30,31,44]
    def rnd5(t):
        e(f'v_cvt_pk_bf16_f32 v{t}, v28, v29'); e(f'v_cvt_pk_bf16_f32 v{t+1}, v30, v31'); e(f'v_cvt_pk_bf16_f32 v{t+2}, v44, v44')
        e(f'v_lshlrev_b32 v28, 16, v{t}'); e(f'v_and_b32 v29, 0xffff0000, v{t}'); e(f'v_lshlrev_b32 v30, 16, v{t+1}'); e(f'v_and_b32 v31, 0xffff0000, v{t+1}'); e(f'v_lshlrev_b32 v44, 16, v{t+2}')
    def red(x,t,op):
        e(f'v_mov_b32 v{t}, v{x}'); e(f'v_permlane32_swap_b32 v{x}, v{t}'); e(f'{op} v{x}, v{x}, v{t}')
        e(f'v_mov_b32 v{t}, v{x}'); e(f'v_permlane16_swap_b32 v{x}, v{t}'); e(f'{op} v{x}, v{x}, v{t}')
        e(f'{op}_dpp v{x}, v{x}, v{x} row_ror:8 row_mask:0xf bank_mask:0xf')
    T('s')
    rnd5(36)
    v1exec(3)
    for v in V: e(f'v_mul_f32 v{v}, s68, v{v}')
    rnd5(36)
    v1exec(4)
    e('v_max3_f32 v36, v28, v29, v30'); e('v_max3_f32 v36, v36, v31, v44'); red(36,37,'v_max_f32')
    T('m')
    v1exec(5)
    e('v_mul_f32 v36, s69, v36')
    for v in V: e(f'v_fma_f32 v{v}, v{v}, s69, -v36')
    for v in V: e(f'v_exp_f32 v{v}, v{v}')
    v1exec(6)
    e('v_add_f32 v36, v28, v29'); e('v_add_f32 v37, v30, v31'); e('v_add_f32 v36, v36, v44'); e('v_add_f32 v36, v36, v37'); red(36,37,'v_add_f32')
    T('e')
    v1exec(7)
    e('v_rcp_f32 v36, v36')
    for v in V: e(f'v_mul_f32 v{v}, v{v}, v36')
    e('v_cvt_pk_bf16_f32 v40, v28, v29'); e('v_cvt_pk_bf16_f32 v41, v30, v31')
    e('v_mov_b32_dpp v45, v44 row_ror:8 row_mask:0xf bank_mask:0xf')
    e('v_mov_b32_dpp v42, v40 row_ror:8 row_mask:0xf bank_mask:0xf'); e('v_mov_b32_dpp v43, v41 row_ror:8 row_mask:0xf bank_mask:0xf')
    e('v_cvt_pk_bf16_f32 v44, v44, v45'); e('v_mov_b32 v45, 0')
    T(5)
    v1exec(8)
    e(f'v_mfma_f32_16x16x32_bf16 {f4(28)}, {f4(76)}, {f4(40)}, 0'); e(f'v_mfma_f32_16x16x32_bf16 {f4(48)}, {f4(32)}, {f4(40)}, 0')
    hadd(AV[1]); e('v_add_f32 v56, v56, v58'); e('v_add_f32 v57, v57, v59'); e('v_cvt_pk_bf16_f32 v56, v56, v57'); e('v_mov_b32 v57, 0')
    e('v_subrev_u32 v11, 0x20000, v11')
    e(f'v_mfma_f32_16x16x16_bf16 {f4(28)}, v[52:53], v[44:45], {f4(28)}'); e(f'v_mfma_f32_16x16x16_bf16 {f4(48)}, v[56:57], v[44:45], {f4(48)}')
    e('v_mov_b32 v0, v56')
    e('s_cmp_eq_u32 s21, 63'); e.fwd('s_cbranch_scc1',L('C_END'),drain=False)
    WA=[40+4*t for t in range(9)]
    for r in list(range(60,76,2)): e(f'v_mov_b64 v[{r}:{r+1}], 0')
    for r in list(range(40,44,2)): e(f'v_mov_b64 v[{r}:{r+1}], 0')
    for i in range(2): e(f'v_cvt_pk_bf16_f32 v{36+i}, v{28+2*i}, v{29+2*i}')
    for i in range(2): e(f'v_cvt_pk_bf16_f32 v{38+i}, v{48+2*i}, v{49+2*i}')
    e('s_mov_b64 exec, s[76:77]'); e(f'ds_write_b128 v8, {f4(36)}'); e('s_mov_b64 exec, -1')
    if hasattr(e,'chain_wait'): e.chain_wait(e)
    e(f's_add_u32 s74, s28, {1<<18}'); kxl('s74')
    for r in list(range(44,60,2)): e(f'v_mov_b64 v[{r}:{r+1}], 0')
    e.wait(lg=0); e('s_barrier'); T(6)
    e(f'ds_read_b128 {f4(20)}, v7 offset:{OXB-MREG}'); e(f'ds_read_b128 {f4(24)}, v7 offset:{OXB-MREG+1024}')
    for t in range(9): sm(WA[t],20,W8(36+2*t))
    def post(t):
        D=WA[t]; hadd(D); e(f'v_pk_add_f32 v[{D}:{D+1}], v[{D}:{D+1}], v[{D+2}:{D+3}]'); e(f'v_cvt_pk_bf16_f32 v{D}, v{D}, v{D+1}'); e(f'v_and_or_b32 v{D}, v{D}, -2, s27')
        e(f'buffer_store_dword v{D}, v12, s[12:15], s25 offen offset:{t*64} {ST}')
    for t in range(9):
        sm(WA[t],24,W8(36+2*t+1))
        if t>=2: post(t-2)
    post(7); post(8)
    T(7)
    e('v_and_b32 v13, 0x1ff, v1'); e('v_lshrrev_b32 v15, 9, v1'); e('v_mul_u32_u24 v20, 9216, v15'); e('v_add_u32 v20, v20, v13')
    e('v_lshlrev_b32 v13, 1, v13'); e('v_lshlrev_b32 v15, 4, v15'); e('v_add_u32 v13, v13, v15'); e('v_add_u32 v13, s65, v13')
    RB=[60,64,68,72]
    def rl():
        e('s_mov_b64 exec, s[78:79]')
        for i in range(4):
            e(f's_add_u32 s74, s26, {i*2*9216}'); e(f'buffer_load_dwordx4 {f4(RB[i])}, v20, s[12:15], s74 offen sc1')
        e('s_mov_b64 exec, -1')
    def rchk():
        e('v_alignbit_b32 v21, v60, v60, 1'); e('v_alignbit_b32 v22, v61, v61, 1')
        for r in range(62,76,2): e(f'v_alignbit_b32 v21, v{r}, v21, 1'); e(f'v_alignbit_b32 v22, v{r+1}, v22, 1')
        e('v_perm_b32 v21, v21, v22, s71')
        e('v_cmp_ne_u32 vcc, s70, v21'); e('s_and_b64 vcc, vcc, s[78:79]')
    for d in range(4): e(f'v_cmp_eq_u32 vcc, {d}, v17'); e(f'v_cndmask_b32 v{40+d}, 0, v14, vcc')
    rl()
    T(8)
    rchk()
    rt=e.u('rr'); ok=e.u('ro')
    e.hzflush(); e.L.append(f'  s_cbranch_vccz {ok}'); e.L.append(rt+':')
    e('s_sub_u32 s31, s31, 1'); e.L.append(f'  s_cbranch_scc1 {ok}_x')
    rl(); e.wait(vm=0); rchk(); e.hzflush(); e.L.append(f'  s_cbranch_vccnz {rt}')
    e.L.append(f'  s_branch {ok}'); e.L.append(f'{ok}_x:'); e.L.append('  s_mov_b32 s31, 0'); e.L.append(ok+':'); e.vm=[]; e.h=[]
    T(9)
    for i in range(4): e(f'v_mfma_f32_32x32x16_bf16 v[44:59], {f4(40)}, {f4(RB[i])}, {"v[44:59]" if i else 0}')
    e('s_mov_b64 exec, s[78:79]'); e(f'ds_write_b128 v13, {f4(44)}'); e('s_mov_b64 exec, -1')
    e.wait(lg=0); e('s_barrier'); T(10)
    nf=e.u('nf'); e('s_cmp_ge_u32 s3, 2'); e.L.append(f'  s_cbranch_scc1 {nf}')
    e('v_add_u32 v13, s63, v7')
    for w in range(4): e(f'ds_read_b64 v[{20+2*w}:{21+2*w}], v13 offset:{9216+640+w*1280}')
    e('v_add_f32 v20, v20, v22'); e('v_add_f32 v21, v21, v23'); e('v_add_f32 v24, v24, v26'); e('v_add_f32 v25, v25, v27'); e('v_add_f32 v20, v20, v24'); e('v_add_f32 v21, v21, v25')
    e('v_cvt_pk_bf16_f32 v20, v20, v21'); e('v_mov_b32 v21, -1')
    e('s_mov_b64 exec, s[44:45]')
    e(f'buffer_store_dword v20, v16, s[12:15], s23 offen {ST}'); e(f'buffer_store_dword v21, v16, s[12:15], s24 offen {ST}')
    e('s_mov_b64 exec, -1')
    e.L.append(nf+':'); e.h=[]
    if os.environ.get('FB','1')=='1': e('s_barrier')
    T(11)
    if PROF>=0:
        pl=e.u('pf'); e(f's_cmp_lg_u32 s21, {PROF}'); e.L.append(f'  s_cbranch_scc1 {pl}')
        e.L.append('  s_waitcnt lgkmcnt(0)')
        e('s_lshl_b32 s74, s20, 2'); e('s_add_u32 s74, s74, s3'); e('s_lshl_b32 s74, s74, 6'); e('s_add_u32 s74, s74, 1024'); e('v_mov_b32 v60, s74')
        e('s_mov_b32 s18, 16384'); e('s_mov_b64 exec, 1')
        for i in range(12):
            e(f'v_mov_b32 v61, s{SP[i]}'); e(f'buffer_store_dword v61, v60, s[16:19], 0 offen offset:{4*i}')
        e('v_mov_b32 v61, s31'); e('buffer_store_dword v61, v60, s[16:19], 0 offen offset:48')
        e('s_mov_b64 exec, -1'); e.L.append('  s_waitcnt vmcnt(0)'); e.L.append(pl+':'); e.vm=[]; e.h=[]
    e('s_mov_b32 s74, s22'); e('s_mov_b32 s22, s23'); e('s_mov_b32 s23, s24'); e('s_mov_b32 s24, s74')
    e('s_xor_b32 s27, s27, 1'); e('s_xor_b32 s70, s70, 0xffff')
    e(f's_add_u32 s28, s28, {1<<18}'); e(f's_add_u32 s29, s29, {1<<17}'); e(f's_add_u32 s30, s30, {1<<16}')
    e('s_add_u32 s21, s21, 1')
    e.hzflush(); e.L.append(f'  s_branch {L("C_STEP")}'); e.vm=[]; e.lg=[]
    e.label(L('C_END'))
    vmst(0)
    if hasattr(e,'chain_post'): e.chain_post(e)
```

```python
from em import *; from lay import *
def wreg(f): return vr(4*f,4,'a') if f<64 else vr(224+4*(f-64),4)
def wsub(f,q):
    b=4*f+2*q
    return vr(b,2,'a') if f<64 else vr(224+b-256,2)
def junkst(e,x):
    e.hzflush(); e.L.append('  '+x); e.t+=1; e.vm.append(set())
def gen_P(e,task='s40',wave='s3',st='',done=None,sig=False):
    e(f's_lshr_b32 s41, {task}, 2'); e(f's_and_b32 s42, {task}, 3')
    e('s_lshr_b32 s43, s41, 4')
    e('s_lshl_b32 s44, s43, 3'); e('s_add_u32 s44, s44, 16')
    e('s_load_dwordx2 s[4:5], s[0:1], 0'); e('s_load_dwordx2 s[8:9], s[0:1], 144')
    e('s_add_u32 s46, s0, s44'); e('s_addc_u32 s47, s1, 0'); e('s_load_dwordx2 s[6:7], s[46:47], 0')
    e.smwait()
    e('s_and_b32 s45, s41, 15'); e('s_lshl_b32 s46, s45, 9')
    srd(e,12,4,2048*1152)
    srd(e,16,6,576*8192)
    e('s_mov_b32 s47, 0x2000000'); e('s_cmp_eq_u32 s43, 1'); e('s_cselect_b32 s47, 0, s47')
    e('s_cmp_eq_u32 s43, 2'); e('s_cselect_b32 s47, 0x1000000, s47')
    srd(e,20,8,0x1000000,off='s47')
    srd(e,24,8,0x10000,off=hex(DUM))
    e('v_and_b32 v1, 63, v0')
    e('v_lshrrev_b32 v4, 5, v1'); e('v_and_b32 v5, 31, v1')
    for p in range(2):
        e(f'v_add_u32 v6, {2*p}, v4'); e('v_lshlrev_b32 v7, 2, v6'); e('v_xor_b32 v7, v7, v5')
        e('v_lshlrev_b32 v7, 4, v7'); e(f'v_lshlrev_b32 v6, 13, v6'); e(f'v_add_u32 v{2+p}, v6, v7')
    e(f's_mul_i32 s48, {wave}, {36*8192}'); e('s_add_u32 s48, s48, s46')
    e(f's_mul_i32 s49, {wave}, {18*1024}')
    def wdma(j):
        buf=(j&1)*73728
        for i in range(18):
            e(f's_add_u32 s50, s48, {(144*j+4*(i>>1))*8192}'); e(f's_add_u32 m0, s49, {buf+i*1024}')
            e.dma(f'buffer_load_dwordx4 v{2+(i&1)}, s[16:19], s50 offen lds',f'#w{j}')
    wdma(0); wdma(1)
    e('v_and_b32 v6, 15, v1'); e('v_lshrrev_b32 v6, 2, v6')
    e('v_lshrrev_b32 v7, 5, v1'); e('v_lshlrev_b32 v7, 3, v7'); e('v_add_u32 v7, v7, v6'); e('v_lshlrev_b32 v7, 9, v7')
    e('v_lshrrev_b32 v8, 4, v1'); e('v_and_b32 v8, 1, v8'); e('v_lshlrev_b32 v8, 1, v8')
    e('v_and_b32 v9, 3, v1'); e('v_lshrrev_b32 v10, 1, v9'); e('v_add_u32 v8, v8, v10')
    e(f's_lshl_b32 s50, {wave}, 3'); e('v_add_u32 v8, s50, v8')
    e('v_lshlrev_b32 v6, 2, v6'); e('v_and_b32 v9, 1, v9'); e('v_lshlrev_b32 v9, 3, v9'); e('v_add_u32 v7, v7, v9')
    e('v_xor_b32 v10, v8, v6'); e('v_lshlrev_b32 v10, 4, v10'); e('v_add_u32 v4, v7, v10')
    e('v_add_u32 v8, 4, v8'); e('v_xor_b32 v10, v8, v6'); e('v_lshlrev_b32 v10, 4, v10'); e('v_add_u32 v5, v7, v10')
    e(f's_mul_i32 s50, {wave}, 576'); e('s_mov_b32 s51, 58255')
    for i in range(9):
        e(f'v_add_u32 v6, s50, v1'); e(f'v_add_u32 v6, {64*i}, v6')
        e('v_mul_lo_u32 v7, v6, s51'); e('v_lshrrev_b32 v7, 22, v7')
        e('v_mul_u32_u24 v8, 72, v7'); e('v_sub_u32 v8, v6, v8')
        e('v_lshrrev_b32 v9, 1, v7'); e('v_and_b32 v9, 7, v9'); e('v_xor_b32 v8, v8, v9')
        e('v_mul_u32_u24 v7, 1152, v7'); e('v_lshlrev_b32 v8, 4, v8'); e(f'v_add_u32 v{16+i}, v7, v8')
    e('v_and_b32 v6, 31, v1'); e('v_lshrrev_b32 v7, 5, v1'); e('v_lshrrev_b32 v25, 1, v6'); e('v_and_b32 v25, 7, v25')
    e('v_mul_u32_u24 v6, 1152, v6')
    for k in range(4):
        e(f'v_add_u32 v26, {2*k}, v7'); e('v_xor_b32 v26, v26, v25'); e('v_lshlrev_b32 v26, 4, v26')
        e(f'v_add_u32 v{8+k}, v6, v26'); e(f'v_add_u32 v{12+k}, {2*36864}, v{8+k}')
    e('v_and_b32 v6, 31, v1'); e('v_lshrrev_b32 v7, 4, v6'); e('v_lshlrev_b32 v7, 10, v7'); e('v_and_b32 v6, 15, v6'); e('v_lshlrev_b32 v6, 4, v6')
    e('v_add_u32 v6, v6, v7'); e('v_lshrrev_b32 v7, 5, v1'); e('v_lshlrev_b32 v7, 8, v7'); e('v_add_u32 v25, v6, v7')
    e('s_lshl_b32 s52, s45, 14'); e(f's_lshl_b32 s53, {wave}, 12'); e('s_add_u32 s52, s52, s53')
    for j in range(4):
        e.need(f'#w{j}'); e('s_barrier')
        buf=(j&1)*73728
        for ks in range(9):
            for ct in range(2):
                f=(9*j+ks)*2+ct
                for q in range(2):
                    off=buf+(16*ks+4*q)*512
                    if off<65536: e(f'ds_read_b64_tr_b16 {wsub(f,q)}, v{4+ct} offset:{off}')
                    else:
                        e(f'v_add_u32 v6, {off&~0x7fff}, v{4+ct}'); e(f'ds_read_b64_tr_b16 {wsub(f,q)}, v6 offset:{off&0x7fff}')
        e.wait(lg=0)
        if j<2:
            e('s_barrier'); wdma(j+2)
    e('s_barrier')
    if sig:
        e('s_load_dwordx2 s[4:5], s[0:1], 136'); e.smwait(); srd(e,16,4,256); e('v_mov_b32 v27, 1')
    def signal(idx_code):
        lab=e.u('P_sg'); e(f's_cmp_lg_u32 {wave}, 0'); e.hzflush(); e.L.append(f'  s_cbranch_scc1 {lab}')
        idx_code(lab)
        e.hzflush(); e.L.append(lab+':'); e.h=[]
    def atom(n=1):
        e('s_lshl_b32 s60, s60, 2'); e('s_add_u32 s60, s60, 128'); e('v_mov_b32 v26, s60'); e('s_mov_b64 exec, 1')
        for i in range(n): junkst(e,f'buffer_atomic_add v27, v26, s[16:19], 0 offen offset:{4*i} sc1')
        e('s_mov_b64 exec, -1')
    e(f's_mul_i32 s49, {wave}, 9216')
    def xdma(buf,sseg):
        L=[]
        for i in range(9):
            L.append(f's_add_u32 m0, s49, {buf*36864+i*1024}')
            L.append((lambda i=i:e.dma(f'buffer_load_dwordx4 v{16+i}, s[12:15], {sseg} offen lds',f'#x{buf}')))
        return L
    SEG=32*1152
    e(f's_mul_i32 s54, s42, {SEG}')
    for b in range(3):
        for x in xdma(b,'s54'): x() if callable(x) else e(x)
        e(f's_add_u32 s54, s54, {4*SEG}')
    e('s_lshl_b32 s55, s42, 18'); e('s_add_u32 s55, s55, s52')
    e('s_mov_b32 s57, 0')
    ACC=[32,64]; XF=96
    def body(isV,lab):
        e('s_mov_b32 s56, 0'); e('s_mov_b32 s58, 1')
        for i in range(4): e(f's_mov_b32 s{28+i}, s{24+i}')
        e.label(lab,drain=False)
        for u in range(4):
            acc=ACC[u&1]; pacc=ACC[(u&1)^1]; buf=u
            if sig:
                if len(e.vm)>9: e.wait(vm=9)
                else: e.L.append('  s_waitcnt vmcnt(9)')
            e.need(f'#x{buf}'); e('s_barrier')
            if sig:
                def code(lab,u=u):
                    e('s_lshl_b32 s60, s57, 2'); e(f's_add_u32 s60, s60, {u}'); e('s_cmp_lt_u32 s60, 2'); e.hzflush(); e.L.append(f'  s_cbranch_scc1 {lab}')
                    e('s_sub_u32 s60, s60, 2'); atom()
                signal(code)
            side=[]
            for ct in range(2):
                a=pacc+16*ct; t=112+8*ct
                if not isV: prs=[(r,r+8) for r in range(8)]
                else: prs=[(0,1),(2,3),(8,9),(10,11),(4,5),(6,7),(12,13),(14,15)]
                for i,(x,y) in enumerate(prs): side.append(f'v_cvt_pk_bf16_f32 v{t+i}, v{a+x}, v{a+y}')
                side.append(f'buffer_store_dwordx4 v[{t}:{t+3}], v25, s[28:31], s56 offen offset:{ct*2048} {st}')
                side.append(f'buffer_store_dwordx4 v[{t+4}:{t+7}], v25, s[28:31], s56 offen offset:{ct*2048+512} {st}')
            if done: side+=done(u)
            side.append('s_min_u32 s59, s54, %d'%(63*SEG))
            side+=xdma((u+3)&3,'s59')
            side.append(f's_add_u32 s54, s54, {4*SEG}')
            main=[]
            def rd(ks):
                ab=(8 if buf<2 else 12)+(ks&3); off=(buf&1)*36864+(ks>>2)*128
                return f'ds_read_b128 v[{XF+4*(ks&3)}:{XF+4*(ks&3)+3}], v{ab} offset:{off}'
            for ks in range(3): e(rd(ks))
            for ks in range(36):
                if ks+3<36: main.append(rd(ks+3))
                xf=f'v[{XF+4*(ks&3)}:{XF+4*(ks&3)+3}]'
                for ct in range(2):
                    D=f'v[{acc+16*ct}:{acc+16*ct+15}]'; Cc=D if ks else '0'
                    w=wreg(ks*2+ct)
                    main.append(f'v_mfma_f32_32x32x16_bf16 {D}, {xf}, {w}, {Cc}' if isV else f'v_mfma_f32_32x32x16_bf16 {D}, {w}, {xf}, {Cc}')
            interleave(e,main,side,start=8,every=2)
            e('s_mov_b32 s56, s55'); e(f's_add_u32 s55, s55, {4<<18}')
            if u==0:
                for i in range(4): e(f's_mov_b32 s{28+i}, s{20+i}')
        e('s_add_u32 s57, s57, 1'); e('s_cmp_lt_u32 s57, 4')
        e.back('s_cbranch_scc1',lab)
        for ct in range(2):
            a=ACC[1]+16*ct; t=112+8*ct
            prs=[(r,r+8) for r in range(8)] if not isV else [(0,1),(2,3),(8,9),(10,11),(4,5),(6,7),(12,13),(14,15)]
            for i,(x,y) in enumerate(prs): e(f'v_cvt_pk_bf16_f32 v{t+i}, v{a+x}, v{a+y}')
            e(f'buffer_store_dwordx4 v[{t}:{t+3}], v25, s[28:31], s56 offen offset:{ct*2048} {st}')
            e(f'buffer_store_dwordx4 v[{t+4}:{t+7}], v25, s[28:31], s56 offen offset:{ct*2048+512} {st}')
        e.waitdrain()
        if sig:
            e('s_barrier')
            def code2(lab): e('s_mov_b32 s60, 14'); atom(2)
            signal(code2); e.waitdrain()
    lv=e.u('P_V'); le=e.u('P_E')
    e('s_cmp_eq_u32 s43, 2');
    sv=( [set(q) for q in e.vm],[set(q) for q in e.lg])
    e.fwd('s_cbranch_scc1',lv,drain=False)
    body(False,e.u('P_LQ')); e.fwd('s_branch',le)
    e.L.append(lv+':'); e.vm,e.lg=sv; e.h=[]
    body(True,e.u('P_LV'))
    e.label(le)
```

```python
from em import *; from lay import *
WSZ=39552; CP=4176; UO=33408
L0=[0,64,128,192,256,384,512,768,1024,1536,2048]
f4=lambda b:f'v[{b}:{b+3}]'
def gen_S(e,task='s40',wave='s3',st=''):
    for i,o in enumerate((64,72,80,88,96,104)): e(f's_load_dwordx2 s[{44+2*i}:{45+2*i}], s[0:1], {o}')
    e('s_load_dwordx2 s[56:57], s[0:1], 112'); e('s_load_dwordx2 s[58:59], s[0:1], 120'); e('s_load_dwordx2 s[60:61], s[0:1], 56'); e('s_load_dwordx2 s[62:63], s[0:1], 128')
    e.smwait()
    e(f's_lshl_b32 s41, {task}, 2'); e(f's_add_u32 s41, s41, {wave}')
    e(f's_mul_i32 s42, {wave}, {WSZ}')
    e('v_and_b32 v1, 63, v0')
    e('s_lshl_b32 s43, s41, 8'); e('v_lshlrev_b32 v2, 1, v1')
    for i in range(6):
        srd(e,4,44+2*i,576*256)
        e(f'buffer_load_ushort v{10+2*i}, v2, s[4:7], s43 offen'); e(f'buffer_load_ushort v{11+2*i}, v2, s[4:7], s43 offen offset:128')
    srd(e,4,56,1152); e('s_lshl_b32 s43, s41, 1'); e('v_mov_b32 v3, s43'); e('buffer_load_ushort v8, v3, s[4:7], 0 offen')
    e('s_mov_b32 s64, 0x3fb8aa3b'); e('s_mov_b32 s65, 0x3e22f983')
    e('v_lshlrev_b32 v8, 16, v8'); e('v_mul_f32 v8, s64, v8'); e('v_exp_f32 v8, v8'); e('v_cvt_pk_bf16_f32 v8, v8, v8'); e('v_lshlrev_b32 v8, 16, v8')
    for r in range(10,22): e(f'v_lshlrev_b32 v{r}, 16, v{r}')
    e('v_mul_u32_u24 v4, 96, v1'); e('v_add_u32 v4, s42, v4')
    for hf in range(2):
        Ar,Ai,Br,Bi,Cr,Ci=[10+2*i+hf for i in range(6)]
        e(f'v_mul_f32 v{Ar}, v8, v{Ar}'); e(f'v_mul_f32 v{Ai}, v8, v{Ai}'); e(f'v_mul_f32 v{Br}, v8, v{Br}'); e(f'v_mul_f32 v{Bi}, v8, v{Bi}')
        e(f'v_mul_f32 v24, v{Cr}, v{Br}'); e(f'v_fma_f32 v24, -v{Ci}, v{Bi}, v24'); e(f'v_mul_f32 v25, v{Cr}, v{Bi}'); e(f'v_fma_f32 v25, v{Ci}, v{Br}, v25')
        e(f'v_mul_f32 v32, s64, v{Ar}'); e(f'v_mul_f32 v33, s65, v{Ai}')
        for c,l0 in enumerate(L0):
            d=34+2*c
            if l0==0: e(f'v_mov_b32 v{d}, v24'); e(f'v_mov_b32 v{d+1}, v25'); continue
            e(f'v_mul_f32 v26, {float(l0)}, v32'.replace(str(float(l0)),hex(fbits(l0)))); e('v_exp_f32 v26, v26')
            e(f'v_mul_f32 v27, {hex(fbits(l0))}, v33'); e('v_fract_f32 v27, v27'); e('v_cos_f32 v28, v27'); e('v_sin_f32 v29, v27')
            e('v_mul_f32 v28, v28, v26'); e('v_mul_f32 v29, v29, v26')
            e(f'v_mul_f32 v{d}, v24, v28'); e(f'v_fma_f32 v{d}, -v25, v29, v{d}'); e(f'v_mul_f32 v{d+1}, v24, v29'); e(f'v_fma_f32 v{d+1}, v25, v28, v{d+1}')
        for i in range(6): e(f'ds_write_b128 v4, {f4(32+4*i)} offset:{hf*6144+16*i}')
    e.wait(lg=0)
    e('v_cvt_f32_u32 v5, v1'); e('v_mov_b32 v6, s42')
    for c in range(11): e(f'v_mov_b32 v{60+c}, 0')
    T=[80,104]
    def rdT(b,off):
        for i in range(6): e(f'ds_read_b128 {f4(b+4*i)}, v6 offset:{off+16*i}')
    rdT(T[0],0); e('s_mov_b32 s66, 0')
    lab=e.u('S_M'); e.label(lab,drain=False)
    for u in range(2):
        b=T[u]
        rdT(T[u^1],96*(u+1))
        e(f'v_mul_f32 v26, v{b}, v5'); e(f'v_mul_f32 v27, v{b+1}, v5'); e('v_exp_f32 v26, v26'); e('v_fract_f32 v27, v27'); e('v_cos_f32 v28, v27'); e('v_sin_f32 v29, v27')
        e('v_mul_f32 v28, v28, v26'); e('v_mul_f32 v29, v29, v26')
        for c in range(11):
            if c in(4,6,8):
                e('v_mul_f32 v30, v29, v29'); e('v_mul_f32 v31, v28, v29'); e('v_fma_f32 v28, v28, v28, -v30'); e('v_add_f32 v29, v31, v31')
            e(f'v_fma_f32 v{60+c}, v{b+2+2*c}, v28, v{60+c}'); e(f'v_fma_f32 v{60+c}, -v{b+3+2*c}, v29, v{60+c}')
    e('v_add_u32 v6, 192, v6'); e('s_add_u32 s66, s66, 2'); e('s_cmp_lt_u32 s66, 128'); e.back('s_cbranch_scc1',lab)
    e.waitdrain()
    e('v_lshlrev_b32 v7, 2, v1'); e('v_add_u32 v7, s42, v7')
    for c in range(11): e(f'ds_write_b32 v7, v{60+c} offset:{UO+c*256}')
    e('v_mov_b32 v9, 0'); e('s_mov_b64 exec, 0xffffff')
    for k in range(8): e(f'ds_write_b32 v7, v9 offset:{k*CP+4080}')
    e('s_mov_b64 exec, -1'); e.wait(lg=0)
    e('v_lshlrev_b32 v10, 1, v1'); e('v_sub_u32 v10, s42, v10')
    for i in range(32):
        l0=64*i
        if l0<256: e(f'ds_read_b32 v{20+(i&3)}, v7 offset:{UO+l0*4}')
        else:
            sh=1 if l0<512 else 2 if l0<1024 else 3; st0=256<<(sh-1); jb=128+128*sh
            e(f'v_add_u32 v11, {l0}, v1'); e('v_cvt_f32_u32 v11, v11'); e('v_cvt_pk_bf16_f32 v11, v11, v11'); e('v_lshlrev_b32 v11, 16, v11'); e('v_cvt_u32_f32 v11, v11')
            e(f'v_subrev_u32 v11, {st0}, v11'); e(f'v_lshrrev_b32 v11, {sh}, v11'); e('v_lshlrev_b32 v11, 2, v11'); e('v_add_u32 v11, s42, v11')
            e(f'ds_read_b32 v{20+(i&3)}, v11 offset:{UO+jb*4}')
        k=20+(i&3); h=24+2*(i&1)
        e(f'v_cvt_pk_bf16_f32 v{h}, v{k}, v{k}'); e(f'v_lshlrev_b32 v12, 16, v{h}'); e(f'v_sub_f32 v12, v{k}, v12'); e(f'v_cvt_pk_bf16_f32 v{h+1}, v12, v12')
        e(f'v_add_u32 v13, {4096-2*l0}, v10')
        for c in range(4):
            e(f'ds_write_b16 v13, v{h} offset:{c*4174}'); e(f'ds_write_b16 v13, v{h+1} offset:{c*4174+4*CP}')
    e.wait(lg=0); e('s_barrier')
    e('v_mov_b32 v20, 0'); e('v_mov_b32 v21, 0'); e('v_mov_b32 v22, 0'); e('v_mov_b32 v23, 0')
    e('v_lshlrev_b32 v14, 4, v1'); e('v_add_u32 v14, s42, v14')
    e(f'ds_write_b128 v14, {f4(20)} offset:{UO}'); e(f'ds_write_b128 v14, {f4(20)} offset:{UO+1024}')
    srd(e,4,60,2048*1152)
    e('v_mul_u32_u24 v15, 1152, v1'); e(f's_mul_i32 s43, {wave}, {512*1152}'); e(f's_lshl_b32 s66, {task}, 3'); e('s_add_u32 s43, s43, s66')
    for i in range(8):
        e(f's_add_u32 s67, s43, {i*64*1152}'); e(f'buffer_load_dwordx2 v[{32+2*i}:{33+2*i}], v15, s[4:7], s67 offen')
    e(f's_lshl_b32 s67, {wave}, 10'); e('v_lshlrev_b32 v16, 1, v1'); e('v_add_u32 v16, s67, v16'); e(f'v_add_u32 v16, {UO+2048}, v16')
    e(f'v_add_u32 v17, {2*WSZ}, v16')
    for i in range(8):
        e(f'ds_write_b16 v16, v{32+2*i} offset:{i*128}'); e(f'ds_write_b16_d16_hi v16, v{32+2*i} offset:{WSZ+i*128}')
        e(f'ds_write_b16 v17, v{33+2*i} offset:{i*128}'); e(f'ds_write_b16_d16_hi v17, v{33+2*i} offset:{WSZ+i*128}')
    e.wait(lg=0); e('s_barrier')
    e('v_and_b32 v20, 31, v1'); e('v_lshrrev_b32 v21, 5, v1'); e('v_sub_u32 v22, 0, v20'); e('v_and_b32 v22, 3, v22')
    e(f'v_mul_u32_u24 v23, {CP-2}, v22'); e('v_lshlrev_b32 v24, 1, v20'); e('v_sub_u32 v23, v23, v24'); e('v_lshlrev_b32 v24, 4, v21'); e('v_add_u32 v23, v23, v24')
    e(f'v_add_u32 v23, {4096-32*14}, v23'); e('v_add_u32 v18, s42, v23'); e(f'v_add_u32 v19, {4*CP}, v18')
    e('v_lshlrev_b32 v23, 6, v20'); e('v_add_u32 v23, v23, v24'); e(f'v_add_u32 v23, {UO+2048-32*14}, v23'); e('v_add_u32 v25, s42, v23')
    for r in range(128,160): e(f'v_mov_b32 v{r}, 0')
    def grp(both,lab,n):
        e('s_mov_b32 s66, 0');
        def ld(t):
            b=32+16*(t&3); o=15-t
            e(f'ds_read2_b64 {f4(b)}, v18 offset0:{4*o} offset1:{4*o+1}'); e(f'ds_read2_b64 {f4(b+4)}, v19 offset0:{4*o} offset1:{4*o+1}')
            e(f'ds_read_b128 {f4(b+8)}, v25 offset:{32*o+2048}')
            if both: e(f'ds_read_b128 {f4(b+12)}, v25 offset:{32*o}')
        e.label(lab)
        for t in range(2): ld(t)
        for t in range(16):
            if t+2<16: ld(t+2)
            b=32+16*(t&3)
            e(f'v_mfma_f32_32x32x16_bf16 v[144:159], {f4(b)}, {f4(b+8)}, v[144:159]')
            if both: e(f'v_mfma_f32_32x32x16_bf16 v[128:143], {f4(b)}, {f4(b+12)}, v[128:143]')
            e(f'v_mfma_f32_32x32x16_bf16 v[144:159], {f4(b+4)}, {f4(b+8)}, v[144:159]')
            if both: e(f'v_mfma_f32_32x32x16_bf16 v[128:143], {f4(b+4)}, {f4(b+12)}, v[128:143]')
        for r in(18,19,25): e(f'v_subrev_u32 v{r}, 512, v{r}')
        e('s_add_u32 s66, s66, 1'); e(f's_cmp_lt_u32 s66, {n}'); e.back('s_cbranch_scc1',lab)
    grp(True,e.u('S_C'),4); grp(False,e.u('S_D'),4)
    e.waitdrain(); e.hzflush(); e('s_barrier')
    e('v_lshlrev_b32 v23, 8, v20'); e('v_lshlrev_b32 v24, 5, v21'); e('v_add_u32 v23, v23, v24'); e(f's_lshl_b32 s67, {wave}, 1'); e('v_add_u32 v23, s67, v23')
    for ct in range(2):
        for r in range(0,16):
            a=128+16*ct+r; i=(r&3)+8*(r>>2)
            e(f'v_cvt_pk_bf16_f32 v{32+(r&3)}, v{a}, v{a}'); e(f'ds_write_b16 v23, v{32+(r&3)} offset:{ct*8192+i*8}')
    e.wait(lg=0); e('s_barrier')
    srd(e,8,58,1152); e(f's_lshl_b32 s66, {task}, 3'); e('v_mov_b32 v3, s66'); e('buffer_load_dwordx2 v[10:11], v3, s[8:11], 0 offen')
    for i in range(8):
        e(f's_add_u32 s67, s43, {i*64*1152}'); e(f'buffer_load_dwordx2 v[{32+2*i}:{33+2*i}], v15, s[4:7], s67 offen')
    e(f's_lshl_b32 s67, {wave}, 12'); e('v_lshlrev_b32 v16, 3, v1'); e('v_add_u32 v16, s67, v16')
    for i in range(8): e(f'ds_read_b64 v[{48+2*i}:{49+2*i}], v16 offset:{i*512}')
    srd(e,8,62,2048*2304)
    e('v_lshlrev_b32 v12, 16, v10'); e('v_and_b32 v13, 0xffff0000, v10'); e('v_lshlrev_b32 v20, 16, v11'); e('v_and_b32 v21, 0xffff0000, v11')
    e('v_mul_u32_u24 v15, 2304, v1'); e(f's_mul_i32 s43, {wave}, {512*2304}'); e('s_add_u32 s43, s43, s66'); e('s_add_u32 s43, s43, 1152')
    for i in range(8):
        for h,(d0,d1) in enumerate(((12,13),(20,21))):
            u=32+2*i+h; y=48+2*i+h
            e(f'v_lshlrev_b32 v22, 16, v{u}'); e(f'v_and_b32 v23, 0xffff0000, v{u}'); e(f'v_mul_f32 v22, v22, v{d0}'); e(f'v_mul_f32 v23, v23, v{d1}')
            e('v_cvt_pk_bf16_f32 v22, v22, v23'); e('v_lshlrev_b32 v24, 16, v22'); e('v_and_b32 v25, 0xffff0000, v22')
            e(f'v_lshlrev_b32 v22, 16, v{y}'); e(f'v_and_b32 v23, 0xffff0000, v{y}'); e('v_add_f32 v22, v22, v24'); e('v_add_f32 v23, v23, v25')
            e(f'v_cvt_pk_bf16_f32 v{u}, v22, v23')
        e(f's_add_u32 s67, s43, {i*64*2304}'); e(f'buffer_store_dwordx2 v[{32+2*i}:{33+2*i}], v15, s[8:11], s67 offen {st}')
    e.waitdrain(); e('s_barrier')
import struct
def fbits(x): return struct.unpack('<I',struct.pack('<f',float(x)))[0]
def ticket(e,off,nm):
    e('s_load_dwordx2 s[4:5], s[0:1], 136'); e.smwait(); srd(e,16,4,256)
    e('s_cmp_lg_u32 s3, 0'); e.fwd('s_cbranch_scc1',nm)
    e('s_mov_b64 exec, 1'); e('v_mov_b32 v4, 1'); e(f'v_mov_b32 v3, {off}'); e('buffer_atomic_add v4, v3, s[16:19], 0 offen sc0 sc1'); e('v_mov_b32 v3, 0'); e('ds_write_b32 v3, v4'); e.wait(lg=0); e('s_mov_b64 exec, -1')
    e.label(nm); e('s_barrier'); e('v_mov_b32 v3, 0'); e('ds_read_b32 v4, v3'); e('v_readfirstlane_b32 s40, v4'); e.wait(lg=0); e('s_barrier')
def worker(e,fusedP=False):
    if fusedP:
        import kp,kx
        ticket(e,76,'WK_W0')
        e('s_cmp_ge_u32 s40, 192'); e.fwd('s_cbranch_scc1','WK_T')
        kp.gen_P(e,st='sc1',sig=True); e.fwd('s_branch','WK_S')
        e.label('WK_T'); e('s_sub_u32 s40, s40, 192'); kx.gen_T(e); e.waitdrain(); e('s_barrier')
        e.label('WK_S')
        ticket(e,80,'WK_W1')
    else: ticket(e,76,'WK_W')
    e('s_cmp_ge_u32 s40, 144'); e.fwd('s_cbranch_scc1','WK_E')
    gen_S(e)
    e.label('WK_E')
```

```python
from em import *; from lay import *
import kp,kx
from build import wave_id
def gPT(e):
    e('s_cmp_ge_u32 s2, 224'); e.fwd('s_cbranch_scc1','PT_END')
    wave_id(e); e('s_mov_b32 s40, s2')
    e('s_cmp_ge_u32 s2, 192'); e.fwd('s_cbranch_scc1','PT_T')
    kp.gen_P(e); e.fwd('s_branch','PT_END')
    e.label('PT_T'); e('s_sub_u32 s40, s2, 192'); kx.gen_T(e)
    e.label('PT_END')
def gX(e):
    e('s_cmp_ge_u32 s2, 256'); e.fwd('s_cbranch_scc1','X_END')
    wave_id(e); kx.xatt_setup(e); e('s_mov_b32 s40, s2')
    e.label('X_L'); kx.gen_X(e)
    e('s_add_u32 s40, s40, 256'); e('s_cmp_lt_u32 s40, 512'); e.back('s_cbranch_scc1','X_L')
    e.label('X_END')
def gW(e):
    e('s_cmp_ge_u32 s2, 192'); e.fwd('s_cbranch_scc1','W_END')
    wave_id(e); e('s_mov_b32 s40, s2'); kx.gen_W(e)
    e.label('W_END')
K={'PT':('pt_kernel',gPT,224),'X':('x_kernel',gX,256),'W':('w_kernel',gW,192)}
import kc
def gC(e):
    e('s_cmp_ge_u32 s2, 256'); e.fwd('s_cbranch_scc1','C_EXIT')
    wave_id(e); kc.team(e)
    e('s_cmp_ge_u32 s20, 32'); e.fwd('s_cbranch_scc1','C_WORK')
    e('s_cmp_lg_u32 s35, 0'); e.fwd('s_cbranch_scc1','C_SLOW')
    kc.gen_chain(e,'','_f'); e.fwd('s_branch','C_EXIT')
    e.label('C_SLOW'); kc.gen_chain(e,'sc1','_s'); e.fwd('s_branch','C_EXIT')
    e.label('C_WORK')
    try:
        import ks; ks.worker(e)
    except ImportError: pass
    e.label('C_EXIT')
K['C']=('c_kernel',gC,256)

def pwait(e,add,va,vb):
    sk=e.u('pw'); lp=e.u('pl')
    e(f's_add_u32 s74, s21, {add}'); e('s_lshr_b32 s74, s74, 2'); e('s_min_u32 s74, s74, 15'); e('s_cmp_lt_u32 s74, s33'); e.hzflush(); e.L.append(f'  s_cbranch_scc1 {sk}')
    A=e.L.append
    A(f'  v_lshrrev_b32 v{va}, 2, v1'); A(f'  v_add_u32 v{va}, 128, v{va}'); A('  s_mov_b32 s75, 0')
    A(lp+':'); A('  s_mov_b64 exec, 0xffff'); A(f'  buffer_load_dword v{vb}, v{va}, s[16:19], 0 offen sc1'); A('  s_waitcnt vmcnt(0)')
    A(f'  v_cmp_eq_u32 vcc, 0xc0, v{vb}'); A('  s_mov_b64 exec, -1'); A('  s_nop 4'); A('  s_not_b32 s33, vcc_lo'); A('  s_ff1_i32_b32 s33, s33')
    A('  s_add_u32 s75, s75, 1'); A('  s_cmp_lt_u32 s74, s33'); A(f'  s_cbranch_scc1 {sk}'); A('  s_cmp_lt_u32 s75, 100000'); A(f'  s_cbranch_scc1 {lp}')
    A(sk+':'); e.h=[]
def gF(e):
    e('s_cmp_ge_u32 s2, 256'); e.fwd('s_cbranch_scc1','C_EXIT')
    wave_id(e); kc.team(e)
    e('s_cmp_ge_u32 s20, 32'); e.fwd('s_cbranch_scc1','C_WORK')
    def w0(e): e('s_mov_b32 s33, 0'); pwait(e,0,28,29)
    e.chain_wait0=w0; e.chain_wait=lambda e:pwait(e,3,28,29)
    e('s_cmp_lg_u32 s35, 0'); e.fwd('s_cbranch_scc1','C_SLOW')
    kc.gen_chain(e,'','_f'); e.fwd('s_branch','C_EXIT')
    e.label('C_SLOW'); kc.gen_chain(e,'sc1','_s'); e.fwd('s_branch','C_EXIT')
    e.label('C_WORK')
    import ks; ks.worker(e,fusedP=True)
    e.label('C_EXIT')
K['F']=('c_kernel',gF,256)
```
